```python
import torch

def _softmax(x, axis=-1):
    return torch.softmax(x, dim=axis)
def _gelu(x):
    return torch.nn.functional.gelu(x, approximate="tanh")
def _silu(x):
    return torch.nn.functional.silu(x)
def _sigmoid(x):
    return torch.sigmoid(x)
def _layernorm(x, axis=-1, eps=1e-5):
    m = x.mean(dim=axis, keepdim=True)
    v = x.var(dim=axis, keepdim=True, unbiased=False)
    return (x - m) / torch.sqrt(v + eps)
def _scatter_add(tgt, idx, src, axis=0):
    return tgt.clone().index_add_(axis, idx, src)
def _segment_sum(src, seg, n):
    out = torch.zeros((n,) + src.shape[1:], dtype=src.dtype)
    return out.index_add_(0, seg, src)
def _pad(x, pw):
    flat = tuple(v for pair in reversed(pw) for v in pair)
    return torch.nn.functional.pad(x, flat)

kernel_name = 'parallel_sum__grouped_kv_mqa__geglu_ffn__prompt'

def setup_inputs():

    _w = (lambda a: (lambda t: t.to(torch.bfloat16) if t.is_floating_point() else t)(torch.as_tensor(a)))
    def _A_setup():
        B, S, D, H = 1, 2048, 640, 32
        Dh = D // H
        return {
            "x": _w((lambda *s: torch.randn(*s, dtype=torch.bfloat16) * 0.05)(B, S, D)),
            "wq": _w((lambda *s: torch.randn(*s, dtype=torch.bfloat16) * 0.2)(D, H * Dh)),
            "wk": _w((lambda *s: torch.randn(*s, dtype=torch.bfloat16) * 0.2)(D, Dh)),
            "wv": _w((lambda *s: torch.randn(*s, dtype=torch.bfloat16) * 0.1)(D, Dh)),
            "wo": _w((lambda *s: torch.randn(*s, dtype=torch.bfloat16) * 0.1)(H * Dh, D)),
        }
    _A_in = _A_setup()

    def _B_setup():
        B, S, D, F = 1, 2048, 640, 1728
        return {
            "x": _w((lambda *s: torch.randn(*s, dtype=torch.bfloat16) * 0.05)(B, S, D)),
            "w_gate": _w((lambda *s: torch.randn(*s, dtype=torch.bfloat16) * 0.1)(D, F)),
            "w_up": _w((lambda *s: torch.randn(*s, dtype=torch.bfloat16) * 0.1)(D, F)),
            "w_down": _w((lambda *s: torch.randn(*s, dtype=torch.bfloat16) * 0.1)(F, D)),
        }
    _B_in = _B_setup()

    return {
        "A_x": _A_in["x"],
        "A_wq": _A_in["wq"],
        "A_wk": _A_in["wk"],
        "A_wv": _A_in["wv"],
        "A_wo": _A_in["wo"],
        "B_x": _B_in["x"],
        "B_w_gate": _B_in["w_gate"],
        "B_w_up": _B_in["w_up"],
        "B_w_down": _B_in["w_down"],
    }

def reference(A_x, A_wq, A_wk, A_wv, A_wo, B_x, B_w_gate, B_w_up, B_w_down):
    def _A_ref(x, wq, wk, wv, wo):
        B, S, D = x.shape
        H = 32
        Dh = D // H
        q = (lambda x, *d: x.permute(*d))((x @ wq).reshape(B, S, H, Dh), 0, 2, 1, 3)
        k = x @ wk
        v = x @ wv
        scores = torch.einsum("bhqd,bkd->bhqk", q, k) * (Dh ** -0.5)
        p = _softmax(scores, axis=-1)
        o = torch.einsum("bhqk,bkd->bhqd", p, v)
        return (lambda x, *d: x.permute(*d))(o, 0, 2, 1, 3).reshape(B, S, H * Dh) @ wo

    def _B_ref(x, w_gate, w_up, w_down):
        return (_gelu(x @ w_gate) * (x @ w_up)) @ w_down

    x = A_x
    xn = _layernorm(x, axis=-1)
    return x + _A_ref(xn, A_wq, A_wk, A_wv, A_wo) + _B_ref(xn, B_w_gate, B_w_up, B_w_down)
```

```python
import re

REG = re.compile(r'^(-|\|)?(abs\()?([vsa])(?:(\d+)|\[(\d+):(\d+)\])\)?\|?$')
SPECIAL = {'vcc': [('s', 106), ('s', 107)], 'vcc_lo': [('s', 106)], 'vcc_hi': [('s', 107)],
           'exec': [('s', 126), ('s', 127)], 'exec_lo': [('s', 126)], 'exec_hi': [('s', 127)], 'm0': [('s', 124)]}
TRANS = ('v_exp_f32', 'v_log_f32', 'v_rcp_f32', 'v_rsq_f32', 'v_sqrt_f32', 'v_sin_f32', 'v_cos_f32', 'v_rcp_iflag_f32')


def regs_of(tok):
    tok = tok.strip()
    if tok in SPECIAL:
        return list(SPECIAL[tok])
    m = REG.match(tok)
    if not m:
        return []
    f = m.group(3)
    if m.group(4) is not None:
        return [(f, int(m.group(4)))]
    return [(f, i) for i in range(int(m.group(5)), int(m.group(6)) + 1)]


class Ins:
    __slots__ = ('text', 'op', 'rd', 'wr', 'kind', 'label', 'target', 'passes', 'srcc', 'ab', 'nops', 'data')

    def __init__(self, text):
        self.text = text
        self.label = None
        self.target = None
        self.rd = set()
        self.wr = set()
        self.kind = 'other'
        self.passes = 0
        self.srcc = set()
        self.ab = set()
        self.nops = 1
        self.data = set()
        t = text.split(';')[0].strip()
        if t.endswith(':'):
            self.label = t[:-1]
            self.kind = 'label'
            self.op = ''
            self.nops = 0
            return
        if t.startswith('.') or not t:
            self.kind = 'directive'
            self.op = ''
            self.nops = 0
            return
        parts = t.split(None, 1)
        op = parts[0]
        self.op = op
        ops = []
        if len(parts) > 1:
            cur = ''
            depth = 0
            for ch in parts[1]:
                if ch in '[(':
                    depth += 1
                if ch in '])':
                    depth -= 1
                if ch == ',' and depth == 0:
                    ops.append(cur.strip())
                    cur = ''
                else:
                    cur += ch
            ops.append(cur.strip())
        mods = ''
        if ops:
            sp = ops[-1].split(None, 1)
            ops[-1] = sp[0]
            mods = sp[1] if len(sp) > 1 else ''
        R = [regs_of(o) for o in ops]
        base = op.replace('_e32', '').replace('_e64', '')
        if op == 's_nop':
            self.kind = 'nop'
            self.nops = int(ops[0], 0) + 1
        elif op.startswith('v_mfma'):
            self.kind = 'mfma'
            self.wr = set(R[0])
            self.ab = set(R[1]) | set(R[2])
            self.srcc = set(R[3])
            self.rd = self.ab | self.srcc
            self.passes = 8 if '32x32' in op else 4
            if '4x4x4' in op:
                self.passes = 2
        elif op.startswith('v_'):
            self.kind = 'valu'
            if base in TRANS:
                self.kind = 'trans'
            if op.startswith('v_cmp'):
                self.wr = set(R[0])
                for r in R[1:]:
                    self.rd |= set(r)
                if op.startswith('v_cmpx'):
                    self.wr |= set(SPECIAL['exec'])
            elif op.startswith('v_permlane'):
                self.kind = 'permlane'
                self.wr = set(R[0]) | set(R[1])
                self.rd = set(self.wr)
            elif op.startswith('v_readfirstlane') or op.startswith('v_readlane'):
                self.kind = 'readlane'
                self.wr = set(R[0])
                for r in R[1:]:
                    self.rd |= set(r)
            elif '_co_' in op:
                self.wr = set(R[0]) | set(R[1])
                for r in R[2:]:
                    self.rd |= set(r)
            else:
                self.wr = set(R[0])
                for r in R[1:]:
                    self.rd |= set(r)
                if base in ('v_fmac_f32', 'v_dot2c_f32_bf16', 'v_writelane_b32') or 'UNUSED_PRESERVE' in mods:
                    self.rd |= set(R[0])
                if base.startswith('v_cndmask') and len(ops) == 3:
                    self.rd |= set(SPECIAL['vcc'])
            if 'dot2' in op:
                self.kind = 'dot'
            if 'dpp' in op or 'row_' in mods or 'quad_perm' in mods:
                self.kind = 'dpp'
        elif op.startswith('ds_'):
            self.kind = 'ds'
            if op.startswith('ds_read') or op.startswith('ds_bpermute') or op.startswith('ds_swizzle'):
                self.wr = set(R[0])
                for r in R[1:]:
                    self.rd |= set(r)
            else:
                for r in R:
                    self.rd |= set(r)
        elif op.startswith('buffer_') or op.startswith('global_'):
            self.kind = 'vmem'
            allm = (mods + ' ').split()
            if op.startswith('buffer_inv') or op.startswith('buffer_wbl2'):
                pass
            elif 'lds' in allm or '_lds_' in op:
                for r in R:
                    self.rd |= set(r)
                self.rd |= set(SPECIAL['m0'])
                self.kind = 'dma'
            elif 'load' in op:
                self.wr = set(R[0])
                for r in R[1:]:
                    self.rd |= set(r)
            else:
                for r in R:
                    self.rd |= set(r)
                if 'x4' in op or 'x3' in op:
                    self.data = set(R[0]) if op.startswith('buffer_') else set(R[1])
        elif op.startswith('s_'):
            self.kind = 'salu'
            if op.startswith('s_cbranch') or op == 's_branch':
                self.kind = 'branch'
                self.target = ops[0]
                if 'vcc' in op:
                    self.rd |= set(SPECIAL['vcc'])
            elif op.startswith('s_cmp') or op.startswith('s_bitcmp') or op in ('s_waitcnt', 's_barrier', 's_endpgm', 's_sleep', 's_setprio'):
                for r in R:
                    self.rd |= set(r)
            else:
                if R:
                    self.wr = set(R[0])
                for r in R[1:]:
                    self.rd |= set(r)
                if 'saveexec' in op:
                    self.wr |= set(SPECIAL['exec'])


VALUISH = ('valu', 'trans', 'permlane', 'readlane', 'dot', 'dpp')
CAP = 24


def need(ins, st):
    n = 0

    def chk(tag, regs, req):
        nonlocal n
        for r in regs:
            a = st.get((tag, r))
            if a is not None and a < req:
                n = max(n, req - a)

    vr = [r for r in ins.rd if r[0] in 'va']
    vw = [r for r in ins.wr if r[0] in 'va']
    sr = [r for r in ins.rd if r[0] == 's']
    if ins.kind == 'mfma':
        chk('valu', vr, 2)
        for p, ab, cc in ((8, 12, 10), (4, 8, 6), (2, 5, 4)):
            chk('mfma%d' % p, ins.ab, ab)
            for r in ins.srcc:
                a = st.get(('mfma%d' % p, r))
                if a is not None and a < cc:
                    key = st.get(('mfmaD', r))
                    if not (key == (min(ins.srcc), len(ins.srcc)) and p == ins.passes and p >= 4):
                        n = max(n, cc - a)
            if ins.wr != ins.srcc:
                chk('mfma%d' % p, ins.wr, cc)
        chk('vexec', [('s', 126)], 4)
    if ins.kind in VALUISH or ins.kind in ('vmem', 'dma', 'ds'):
        for p, req in ((8, 12), (4, 8), (2, 5)):
            chk('mfma%d' % p, vr + vw, req)
    if ins.kind in VALUISH:
        for p, req in ((8, 7), (4, 3), (2, 1)):
            chk('srcc%d' % p, vw, req)
        chk('sdata', vw, 2)
        if ins.kind != 'trans':
            chk('trans', vr, 1)
        if ins.kind != 'dot':
            chk('dot', vr + vw, 3)
        else:
            chk('dot', [r for r in vr if r not in ins.wr], 3)
        chk('vsgpr', sr, 4 if ins.kind == 'readlane' else 2)
        if ins.kind == 'readlane':
            chk('valu', vr, 1)
            chk('vexec', [('s', 126)], 4)
        if ins.kind in ('permlane', 'dpp'):
            chk('valu', vr, 2)
            chk('vexec', [('s', 126)], 5)
    if ins.kind in ('vmem', 'dma', 'ds'):
        chk('vsgpr', sr, 5)
        chk('sdata', vw, 1)
        chk('trans', vr, 1)
        chk('dot', vr, 3)
    if ins.kind == 'mfma':
        chk('dot', vr, 3)
    if ins.kind == 'dma':
        chk('m0', [('s', 124)], 1)
    if ins.kind in ('salu', 'branch'):
        chk('vsgpr', sr, 1)
    return n


def step(ins, st):
    k = ins.nops
    if k == 0:
        return st
    ns = {}
    for key, a in st.items():
        if key[0] == 'mfmaD':
            ns[key] = a
        elif a + k < CAP:
            ns[key] = a + k
    if ins.kind == 'mfma':
        d = (min(ins.wr), len(ins.wr))
        for r in ins.wr:
            for p in (2, 4, 8):
                ns.pop(('mfma%d' % p, r), None)
            ns[('mfma%d' % ins.passes, r)] = 0
            ns[('mfmaD', r)] = d
        for r in ins.srcc:
            ns[('srcc%d' % ins.passes, r)] = 0
    elif ins.kind in VALUISH:
        for r in ins.wr:
            if r[0] == 's':
                ns[('vsgpr', r)] = 0
                if r == ('s', 126):
                    ns[('vexec', r)] = 0
            else:
                ns[('valu', r)] = 0
                if ins.kind == 'trans':
                    ns[('trans', r)] = 0
                if ins.kind == 'dot':
                    ns[('dot', r)] = 0
    elif ins.kind == 'salu':
        if ('s', 124) in ins.wr:
            ns[('m0', ('s', 124))] = 0
    elif ins.kind == 'vmem':
        for r in ins.data:
            ns[('sdata', r)] = 0
    return ns


def merge(a, b):
    if a is None:
        return dict(b)
    o = dict(a)
    for k, v in b.items():
        if k[0] == 'mfmaD':
            if k in o and o[k] != v:
                o[k] = None
            elif k not in o:
                o[k] = v
        elif k not in o or v < o[k]:
            o[k] = v
    return o


class Asm:
    def __init__(self):
        self.ins = []

    def __call__(self, text):
        for line in text.split('\n'):
            line = line.strip()
            if line:
                self.ins.append(Ins(line))

    def fix(self, verbose=False):
        total = 0
        for _ in range(8):
            ins = self.ins
            labels = {x.label: i for i, x in enumerate(ins) if x.label}
            inst = [None] * (len(ins) + 1)
            inst[0] = {}
            pads = {}
            work = [0]
            seen = 0
            while work:
                i = work.pop()
                st = inst[i]
                while i < len(ins):
                    seen += 1
                    x = ins[i]
                    n = need(x, st) if x.nops else 0
                    if n > pads.get(i, 0):
                        pads[i] = n
                    if pads.get(i, 0):
                        st = step(Ins('s_nop %d' % (pads[i] - 1)), st)
                    st = step(x, st)
                    if x.op == 's_endpgm':
                        break
                    if x.kind == 'branch' and x.target in labels:
                        j = labels[x.target]
                        m = merge(inst[j], st)
                        if m != inst[j]:
                            inst[j] = m
                            work.append(j)
                        if x.op == 's_branch':
                            break
                    i += 1
                    if i < len(ins) and ins[i].label:
                        m = merge(inst[i], st)
                        if m == inst[i]:
                            break
                        inst[i] = m
                        st = m
            if not pads:
                break
            out = []
            for i, x in enumerate(ins):
                if i in pads:
                    n = pads[i]
                    total += n
                    if verbose:
                        print('pad %d before: %s' % (n, x.text))
                    while n > 0:
                        k = min(n, 16)
                        out.append(Ins('s_nop %d' % (k - 1)))
                        n -= k
                out.append(x)
            self.ins = out
        return total

    def text(self):
        o = []
        for x in self.ins:
            if x.kind == 'label' or x.kind == 'directive':
                o.append(x.text)
            else:
                o.append('    ' + x.text)
        return '\n'.join(o) + '\n'
```

```python
import sys, math, struct
sys.path.insert(0, 'gen')
from asmlib import Asm

NAME = 'parallel_sum__grouped_kv_mqa__geglu_ffn__prompt'
KVF, KVF_SZ = 0, 64 * 3584
STATS = 0x40000
KFLAG, HFLAG, OFLAG, PFLAG, NONCE = 0x80000, 0x88000, 0x90000, 0x98000, 0x53000
OF, HF, PF = 0x100000, 0x400000, 0xB00000
WS_SZ = 0x2000000
LDS = 81920
SPIN = 400000


def f2u(x):
    return struct.unpack('<I', struct.pack('<f', x))[0]


LOG2E = 1.4426950408889634
C1 = -2.0 * LOG2E * math.sqrt(2.0 / math.pi)
C2 = C1 * 0.044715
QS = 20 ** -0.5 * LOG2E
OFFSET = 80.0

X, W, WSR, DBG, OUT, W2, KVR = 's[40:43]', 's[44:47]', 's[48:51]', 's[52:55]', 's[56:59]', 's[60:63]', 's[72:75]'


def vr(b, n=1):
    return 'v%d' % b if n == 1 else 'v[%d:%d]' % (b, b + n - 1)


class VM:
    def __init__(self):
        self.q = []

    def issue(self, tag):
        self.q.append(tag)

    def cnt(self, tag):
        idx = max(i for i, t in enumerate(self.q) if t == tag)
        n = len(self.q) - 1 - idx
        self.q = self.q[idx + 1:]
        assert n <= 63
        return n

    def has(self, tag):
        return tag in self.q


def srd(a, s, ptr, size):
    b = int(s[2:s.index(':')])
    a('s_mov_b32 s%d, s%d' % (b, ptr))
    a('s_mov_b32 s%d, s%d' % (b + 1, ptr + 1))
    a('s_mov_b32 s%d, 0x%x' % (b + 2, size))
    a('s_mov_b32 s%d, 0x00020000' % (b + 3))


uid = [0]


def spin_tail(a, L):
    a('s_sleep %d' % OPT.get('sleep', 4))
    a('s_sub_u32 s70, s70, 1')
    a('s_cmp_lg_u32 s70, 0')
    a('s_cbranch_scc1 %s' % L)
    a(L + '_done:')


def poll(a, soff, mask, optional=True, tmp=2, low=None):
    if OPT.get('nopoll') and optional:
        a('s_waitcnt vmcnt(0)')
        return
    uid[0] += 1
    L = 'L_poll%d' % uid[0]
    a('s_mov_b32 s66, %s' % mask)
    a('s_mov_b32 s67, 0')
    a('s_mov_b32 s70, %d' % SPIN)
    if low is not None:
        a('s_waitcnt vmcnt(0)')
        prio(a, 3)
    a('v_lshlrev_b32 v%d, 7, v0' % (tmp + 1))
    a(L + ':')
    a('s_mov_b64 exec, s[66:67]')
    a('buffer_load_dword v%d, v%d, %s, %s offen sc1' % (tmp, tmp + 1, WSR, soff))
    a('s_mov_b64 exec, -1')
    a('s_waitcnt vmcnt(0)')
    a('v_cmp_eq_u32 vcc, s64, v%d' % tmp)
    a('s_and_b64 s[68:69], vcc, s[66:67]')
    a('s_cmp_eq_u64 s[68:69], s[66:67]')
    a('s_cbranch_scc1 %s_done' % L)
    spin_tail(a, L)
    if low is not None:
        prio(a, low)


def nonce_load(a, reg):
    return 'buffer_load_dword v%d, off, %s, 0 offset:128 sc1' % (reg, DBG)


def nonce_get(a, reg, loaded):
    uid[0] += 1
    L = 'L_poll%d' % uid[0]
    a('s_mov_b32 s70, %d' % SPIN)
    if loaded:
        a('v_readfirstlane_b32 s64, v%d' % reg)
        a('s_cmp_lg_u32 s64, 0')
        a('s_cbranch_scc1 %s_done' % L)
    a(L + ':')
    a(nonce_load(a, reg))
    a('s_waitcnt vmcnt(0)')
    a('v_readfirstlane_b32 s64, v%d' % reg)
    a('s_cmp_lg_u32 s64, 0')
    a('s_cbranch_scc1 %s_done' % L)
    spin_tail(a, L)


def publish(a, soff):
    a('v_mov_b32 v2, s64')
    a('s_mov_b64 exec, 1')
    a('buffer_store_dword v2, off, %s, %s sc1' % (WSR, soff))
    a('s_mov_b64 exec, -1')


def prio(a, p):
    a('s_setprio %d' % p)


def halves_sum(a, v, t):
    a('v_mov_b32 v%d, v%d' % (t, v))
    a('v_permlane32_swap_b32 v%d, v%d' % (v, t))
    a('v_add_f32 v%d, v%d, v%d' % (v, v, t))


def x_voff(a, d0, d1, srow, t0, t1):
    a('v_lshrrev_b32 v%d, 3, v0' % t0)
    a('v_add_u32 v%d, %s, v%d' % (t0, srow, t0))
    a('v_mul_u32_u24 v%d, 1280, v%d' % (t0, t0))
    a('v_lshrrev_b32 v%d, 4, v0' % t1)
    a('v_xor_b32 v%d, v0, v%d' % (t1, t1))
    a('v_and_b32 v%d, 7, v%d' % (t1, t1))
    a('v_lshl_add_u32 v%d, v%d, 4, v%d' % (d0, t1, t0))
    a('v_xor_b32 v%d, 4, v%d' % (t1, t1))
    a('v_lshl_add_u32 v%d, v%d, 4, v%d' % (d1, t1, t0))


def x_raddr(a, d, base, t0, t1):
    a('v_and_b32 v%d, 31, v0' % t0)
    a('v_lshrrev_b32 v%d, 5, v0' % t1)
    a('v_bfe_u32 v%d, v0, 1, 3' % d)
    a('v_xor_b32 v%d, v%d, v%d' % (t1, t1, d))
    a('v_lshlrev_b32 v%d, 7, v%d' % (t0, t0))
    a('v_add_u32 v%d, %s, v%d' % (t0, base, t0))
    for s in range(4):
        a('v_xor_b32 v%d, %d, v%d' % (d + s, 2 * s, t1))
        a('v_lshl_add_u32 v%d, v%d, 4, v%d' % (d + s, d + s, t0))


def tr_lane(a, drow, dcol, hmul):
    a('v_bfe_u32 v%d, v0, 2, 2' % drow)
    a('v_lshrrev_b32 v%d, 5, v0' % dcol)
    a('v_mul_u32_u24 v%d, %d, v%d' % (dcol, hmul, dcol))
    a('v_add_u32 v%d, v%d, v%d' % (drow, drow, dcol))
    a('v_and_b32 v%d, 3, v0' % dcol)
    a('v_lshlrev_b32 v%d, 3, v%d' % (dcol, dcol))


def divc(a, di, drow, dc, n=12):
    m = {12: 5462, 20: 3277}[n]
    assert all((i * m) >> 16 == i // n for i in range(320))
    a('v_mul_u32_u24 v%d, %d, v%d' % (drow, m, di))
    a('v_lshrrev_b32 v%d, 16, v%d' % (drow, drow))
    a('v_mul_u32_u24 v%d, %d, v%d' % (dc, n, drow))
    a('v_sub_u32 v%d, v%d, v%d' % (dc, di, dc))


MF16 = 'v_mfma_f32_32x32x16_bf16'
MF8 = 'v_mfma_f32_32x32x8_bf16'


def mfma(a, d, x, y, c=None, op=MF16):
    n = 4 if op == MF16 else 2
    a('%s %s, %s, %s, %s' % (op, vr(d, 16), vr(x, n), vr(y, n), vr(d, 16) if c is None else c))


STAMPS = [False]
OPT = {}


def stamp(a, i, low=None):
    if STAMPS[0]:
        a('s_waitcnt lgkmcnt(0)')
        a('s_memrealtime s[100:101]')
        a('s_waitcnt lgkmcnt(0)')
        if low is not None:
            prio(a, 3)
        a('v_writelane_b32 v15, s100, %d' % i)
        if low is not None:
            prio(a, low)


def stamp_flush(a):
    if STAMPS[0]:
        stamp(a, 15)
        a('s_memtime s[100:101]')
        a('s_waitcnt lgkmcnt(0)')
        a('v_writelane_b32 v15, s100, 14')
        a('s_mov_b64 exec, 0xffff')
        a('s_lshl_b32 s4, s99, 2')
        a('s_add_u32 s4, s4, s3')
        a('s_lshl_b32 s4, s4, 6')
        a('s_add_u32 s4, s4, 0x60000')
        a('buffer_store_dword v15, v1, %s, s4 offen' % WSR)


def emit(a, vm, d):
    for y in d[:-1]:
        a(y)
    vm.issue(d[-1])


MS = 'v_mfma_f32_16x16x32_bf16'


def sel_ones(a, d, t0, t1):
    a('v_and_b32 v%d, 15, v0' % t0)
    a('v_bfe_u32 v%d, v0, 4, 1' % t1)
    a('v_cmp_eq_u32 vcc, v%d, v%d' % (t0, t1))
    a('v_mov_b32 v%d, 0x3f803f80' % t0)
    for i in range(4):
        a('v_cndmask_b32 v%d, 0, v%d, vcc' % (d + i, t0))


def rowsum(a, d, frag, ones):
    a('%s %s, %s, %s, %s' % (MS, vr(d, 4), vr(frag, 4), vr(ones, 4), vr(d, 4)))


def rowsum_store(a, d, sbase, t0, t1):
    a('v_and_b32 v%d, 15, v0' % t0)
    a('v_lshrrev_b32 v%d, 4, v0' % t1)
    a('v_cmp_gt_u32 vcc, 2, v%d' % t0)
    a('v_lshl_add_u32 v%d, v%d, 2, v%d' % (t0, t0, t1))
    a('v_lshlrev_b32 v%d, 4, v%d' % (t0, t0))
    a('v_add_u32 v%d, %s, v%d' % (t0, sbase, t0))
    a('s_mov_b64 exec, vcc')
    a('ds_write_b128 v%d, %s' % (t0, vr(d, 4)))
    a('s_mov_b64 exec, -1')


def prologue(a):
    a('s_cmp_ge_u32 s2, 512')
    a('s_cbranch_scc1 L_end')
    a('s_load_dwordx16 s[16:31], s[0:1], 0')
    a('s_load_dwordx8 s[32:39], s[0:1], 64')
    a('v_lshrrev_b32 v1, 6, v0')
    a('v_and_b32 v0, 63, v0')
    a('v_readfirstlane_b32 s3, v1')
    a('v_lshlrev_b32 v1, 2, v0')
    a('s_waitcnt lgkmcnt(0)')
    srd(a, X, 16, 2048 * 1280)
    srd(a, WSR, 38, WS_SZ)
    srd(a, DBG, 36, 256)
    srd(a, OUT, 34, 2048 * 1280)
    srd(a, W2, 24, 640 * 1280)
    srd(a, KVR, 38, KVF_SZ)
    srd(a, W, 18, 640 * 1280)
    if STAMPS[0]:
        a('s_mov_b32 s99, s2')
        a('v_mov_b32 v15, 0')
    stamp(a, 0)
    if STAMPS[0]:
        a('s_memtime s[100:101]')
        a('s_waitcnt lgkmcnt(0)')
        a('v_writelane_b32 v15, s100, 13')
    a('s_cmp_lt_u32 s2, 256')
    a('s_cbranch_scc1 %s' % ('L_idle' if OPT.get('noA') else 'L_roleA'))
    a('s_sub_u32 s2, s2, 256')
    a('s_cmp_lt_u32 s2, 216')
    a('s_cbranch_scc1 %s' % ('L_idle' if OPT.get('noG1') else 'L_roleG1'))
    prio(a, 3)
    a('s_cmp_lt_u32 s2, 248')
    a('s_cbranch_scc1 L_roleKV')
    a('s_cmp_lg_u32 s2, 248')
    a('s_cbranch_scc1 L_getnonce')
    a('s_cmp_lg_u32 s3, 0')
    a('s_cbranch_scc1 L_getnonce')
    a('s_mov_b32 s4, 0x%x' % NONCE)
    a('buffer_load_dword v2, off, %s, s4 sc1' % WSR)
    a('s_waitcnt vmcnt(0)')
    a('v_add_u32 v2, 1, v2')
    a('v_max_u32 v2, 1, v2')
    a('s_mov_b64 exec, 1')
    a('buffer_store_dword v2, off, %s, 0 offset:128 sc1' % DBG)
    a('buffer_store_dword v2, off, %s, s4 sc1' % WSR)
    a('s_mov_b64 exec, -1')
    a('L_getnonce:')
    nonce_get(a, 2, False)
    a('s_branch L_roleG2')


def role_kv(a):
    SL = 26624
    SC = 3 * SL
    a('L_roleKV:')
    a('s_sub_u32 s4, s2, 216')
    a('s_and_b32 s5, s4, 7')
    a('s_lshr_b32 s4, s4, 3')
    a('s_lshl_b32 s5, s5, 2')
    a('s_add_u32 s76, s5, s4')
    a('s_lshl_b32 s77, s76, 6')
    a('s_and_b32 s78, s3, 1')
    a('s_lshr_b32 s79, s3, 1')
    a('s_cmp_eq_u32 s79, 0')
    a('s_cselect_b32 s44, s20, s22')
    a('s_cselect_b32 s45, s21, s23')
    a('s_mov_b32 s46, 25600')
    a('s_lshl_b32 s4, s3, 4')
    a('s_add_u32 s4, s4, s77')
    x_voff(a, 10, 11, 's4', 2, 3)
    a('v_add_u32 v11, 10240, v11')
    a('s_lshl_b32 s4, s78, 11')
    a('v_lshl_add_u32 v12, v0, 4, s4')
    a('s_lshl_b32 s80, s3, 11')
    a('s_mul_i32 s81, s79, 5120')
    a('s_add_u32 s81, s81, s4')
    a('s_add_u32 s81, s81, 16384')
    vm = VM()

    def dma(sb):
        sl = (sb % 3) * SL
        o = []
        for img in range(2):
            for n in range(2):
                o.append(['s_add_u32 m0, s80, %d' % (sl + img * 8192 + n * 1024), 's_mov_b32 s4, %d' % (sb * 256 + img * 128),
                          'buffer_load_dwordx4 v%d, %s, s4 offen lds' % (10 + n, X), sb])
        for i in range(3):
            o.append(['s_add_u32 m0, s81, %d' % sl, 's_mov_b32 s4, %d' % (sb * 5120),
                      'buffer_load_dwordx4 v12, %s, s4 offen offset:%d lds' % (W, i * 1024), sb])
        return o

    for sb in range(3):
        for d in dma(sb):
            emit(a, vm, d)
    a('v_add_u32 v2, s77, v0')
    a('v_mul_u32_u24 v2, 1280, v2')
    a('s_lshl_b32 s4, s3, 7')
    a('s_add_u32 s4, s4, 768')
    emit(a, vm, ['buffer_load_dword v13, v2, %s, s4 offen' % X, 'pf'])
    a('v_lshlrev_b32 v2, 7, v0')
    a('s_mul_i32 s4, s78, 5120')
    a('s_add_u32 s4, s4, 15360')
    emit(a, vm, ['buffer_load_dword v14, v2, %s, s4 offen' % W, 'pf'])
    a('s_lshl_b32 s4, s78, 12')
    x_raddr(a, 16, 's4', 2, 3)
    tr_lane(a, 2, 3, 8)
    a('v_mul_u32_u24 v2, 40, v2')
    a('v_and_b32 v4, 16, v0')
    a('v_cmp_ne_u32 vcc, 0, v4')
    a('v_cndmask_b32 v3, v3, 32, vcc')
    a('v_add_u32 v2, v2, v3')
    a('s_mul_i32 s4, s79, 5120')
    a('s_add_u32 s4, s4, 16384')
    a('v_add_u32 v20, s4, v2')
    a('v_mov_b32 v21, 0x3f803f80')
    sel_ones(a, 4, 2, 3)
    for r in list(range(22, 30)) + list(range(32, 64)):
        a('v_mov_b32 v%d, 0' % r)
    a('s_cmp_eq_u32 s79, 0')
    a('s_cbranch_scc0 L_kvV')
    vm0 = list(vm.q)
    for kind in range(2):
        vm.q = list(vm0)
        if kind == 1:
            a('L_kvV:')
        for sb in range(6):
            rd = []
            pend = []
            if sb < 5:
                sl = (sb % 3) * SL
                XF, WF = 64 + 64 * (sb & 1), 96 + 64 * (sb & 1)
                a('s_waitcnt vmcnt(%d) lgkmcnt(0)' % vm.cnt(sb))
                a('s_barrier')
                if sb in (0, 3):
                    stamp(a, 1 if sb == 0 else 2)
                for s in range(8):
                    rd.append('ds_read_b128 %s, v%d offset:%d' % (vr(XF + 4 * s, 4), 16 + (s & 3), sl + (s >> 2) * 8192))
                    rd.append('ds_read_b64_tr_b16 %s, v20 offset:%d' % (vr(WF + 4 * s, 2), sl + s * 640))
                    rd.append('ds_read_b64_tr_b16 %s, v20 offset:%d' % (vr(WF + 4 * s + 2, 2), sl + s * 640 + 160))
                if sb in (1, 2):
                    pend = dma(sb + 2)
                if sb == 3:
                    pend = [[nonce_load(a, 13), 'n']]
            else:
                a('s_waitcnt lgkmcnt(0)')
            if sb == 0:
                for y in rd:
                    a(y)
                continue
            XF, WF = 64 + 64 * ((sb - 1) & 1), 96 + 64 * ((sb - 1) & 1)
            for s in range(8):
                if kind == 0:
                    mfma(a, 32, WF + 4 * s, XF + 4 * s)
                else:
                    mfma(a, 32, XF + 4 * s, WF + 4 * s)
                if pend:
                    emit(a, vm, pend.pop(0))
                for y in rd[3 * s:3 * s + 1]:
                    a(y)
                rowsum(a, 26, WF + 4 * s, 4)
                for y in rd[3 * s + 1:3 * s + 2]:
                    a(y)
                if (s & 1) == kind:
                    mfma(a, 48, XF + 4 * s, XF + 4 * s)
                else:
                    rowsum(a, 22, XF + 4 * s, 4)
                for y in rd[3 * s + 2:3 * s + 3]:
                    a(y)
        stamp(a, 3)
        a('s_lshl_b32 s4, s78, 8')
        a('s_add_u32 s4, s4, %d' % SC)
        a('s_add_u32 s6, s4, %d' % (kind * 512))
        a('s_lshl_b32 s5, s3, 8')
        a('s_add_u32 s5, s5, %d' % (SC + 1024))
        rowsum_store(a, 22, 's6', 2, 3)
        rowsum_store(a, 26, 's5', 2, 3)
        a('v_and_b32 v4, 31, v0')
        for bit, n, st in ((0, 8, 1), (1, 4, 2), (3, 2, 4), (4, 1, 8)):
            a('v_and_b32 v2, %d, v0' % (1 << bit))
            a('v_cmp_ne_u32 vcc, 0, v2')
            for i in range(n):
                a('v_cndmask_b32 v%d, v%d, v%d, vcc' % (48 + 2 * st * i, 48 + 2 * st * i, 48 + 2 * st * i + st))
        a('v_lshlrev_b32 v4, 2, v4')
        a('v_bfe_u32 v2, v0, 2, 1')
        a('v_lshrrev_b32 v7, 5, v0')
        a('v_cmp_eq_u32 vcc, v2, v7')
        a('v_add_u32 v5, s6, v4')
        a('s_mov_b64 exec, vcc')
        a('ds_write_b32 v5, v48 offset:128')
        a('s_mov_b64 exec, -1')
        a('v_add_u32 v5, s4, v4')
        a('v_add_u32 v6, s5, v4')
        a('v_lshl_add_u32 v7, v7, 4, s5')
        a('s_waitcnt lgkmcnt(0)')
        a('s_barrier')
        a('ds_read2_b32 v[26:27], v5 offset1:32')
        a('ds_read2_b32 v[22:23], v5 offset0:128 offset1:160')
        if kind == 0:
            for q in range(3):
                a('ds_read_b128 %s, v7 offset:%d' % (vr(64 + 4 * q, 4), 32 * q))
        else:
            a('ds_read_b32 v24, v6')
        a('s_mov_b32 s4, 0x%x' % f2u(1.0 / 640))
        a('s_waitcnt lgkmcnt(0)')
        a('v_add_f32 v26, v26, v22')
        a('v_add_f32 v27, v27, v23')
        a('v_mul_f32 v26, s4, v26')
        a('v_mul_f32 v27, s4, v27')
        a('v_fma_f32 v27, -v26, v26, v27')
        a('v_max_f32 v27, 0, v27')
        a('v_add_f32 v27, 0x%x, v27' % f2u(1e-5))
        a('v_sqrt_f32 v30, v27')
        a('v_sub_f32 v28, 0, v26')
        a('v_rcp_f32 v29, v30')
        a('v_mov_b32 v31, v27')
        a('s_lshl_b32 s4, s76, 1')
        a('s_add_u32 s4, s4, s78')
        a('s_mul_i32 s5, s4, 3584')
        a('v_lshlrev_b32 v8, 4, v0')
        if kind == 0:
            a('s_lshl_b32 s4, s4, 9')
            a('s_add_u32 s4, s4, 0x%x' % STATS)
            a('v_lshlrev_b32 v4, 2, v4')
            a('buffer_store_dwordx4 v[28:31], v4, %s, s4 offen sc1' % WSR)
            for i in range(12):
                a('v_fma_f32 v%d, v28, v%d, v%d' % (32 + i, 64 + i, 32 + i))
            for i in range(12):
                a('v_mul_f32 v%d, v29, v%d' % (32 + i, 32 + i))
            for i in range(6):
                a('v_cvt_pk_bf16_f32 v%d, v%d, v%d' % (80 + i, 32 + 2 * i, 33 + 2 * i))
            a('v_cmp_lt_u32 vcc, 31, v0')
            a('v_mov_b32 v2, 0x3f80')
            a('v_cndmask_b32 v84, v84, v21, vcc')
            a('v_cndmask_b32 v85, v85, v2, vcc')
            a('v_lshlrev_b32 v9, 3, v0')
            a('buffer_store_dwordx4 v[80:83], v8, %s, s5 offen sc1' % WSR)
            a('buffer_store_dwordx2 v[84:85], v9, %s, s5 offen offset:1024 sc1' % WSR)
        else:
            a('v_mul_f32 v28, v28, v29')
            a('ds_write_b32 v6, v28')
            a('ds_write_b32 v6, v29 offset:128')
            a('s_waitcnt lgkmcnt(0)')
            for q in range(4):
                a('ds_read_b128 %s, v7 offset:%d' % (vr(64 + 4 * q, 4), 32 * q))
                a('ds_read_b128 %s, v7 offset:%d' % (vr(80 + 4 * q, 4), 128 + 32 * q))
            a('v_and_b32 v2, 31, v0')
            a('v_cmp_gt_u32 vcc, 20, v2')
            a('v_cmp_eq_u32 s[6:7], 20, v2')
            a('v_cndmask_b32 v3, 0, v21, s[6:7]')
            a('s_waitcnt lgkmcnt(0)')
            for i in range(16):
                a('v_mul_f32 v%d, v24, v%d' % (64 + i, 64 + i))
            for i in range(16):
                a('v_fma_f32 v%d, v%d, v%d, v%d' % (32 + i, 32 + i, 80 + i, 64 + i))
            for i in range(8):
                a('v_cvt_pk_bf16_f32 v%d, v%d, v%d' % (96 + i, 32 + 2 * i, 33 + 2 * i))
            for i in range(8):
                a('v_cndmask_b32 v%d, v3, v%d, vcc' % (96 + i, 96 + i))
            a('buffer_store_dwordx4 v[96:99], v8, %s, s5 offen offset:1536 sc1' % WSR)
            a('buffer_store_dwordx4 v[100:103], v8, %s, s5 offen offset:2560 sc1' % WSR)
        if kind == 0:
            a('s_branch L_kvpub')
    a('L_kvpub:')
    stamp(a, 4)
    a('s_waitcnt vmcnt(0)')
    nonce_get(a, 13, True)
    a('s_barrier')
    stamp(a, 5)
    a('s_cmp_lg_u32 s3, 0')
    a('s_cbranch_scc1 L_roleG2')
    a('s_lshl_b32 s4, s76, 7')
    a('s_add_u32 s4, s4, 0x%x' % KFLAG)
    publish(a, 's4')
    a('s_branch L_roleG2')


def role_a(a):
    SL = 20480
    a('L_roleA:')
    prio(a, 2)
    a('s_and_b32 s4, s2, 7')
    a('s_lshr_b32 s5, s2, 3')
    a('s_and_b32 s79, s5, 7')
    a('s_lshr_b32 s5, s5, 3')
    a('s_lshl_b32 s4, s4, 2')
    a('s_add_u32 s76, s4, s5')
    a('s_lshl_b32 s77, s76, 6')
    a('s_lshl_b32 s4, s3, 4')
    a('s_add_u32 s4, s4, s77')
    x_voff(a, 10, 11, 's4', 2, 3)
    a('v_add_u32 v11, 10240, v11')
    a('s_mul_i32 s4, s3, %d' % (16 * 1280))
    a('s_mul_i32 s5, s79, 160')
    a('s_add_u32 s4, s4, s5')
    a('s_lshl_b32 s80, s3, 11')
    a('s_mul_i32 s81, s3, 3072')
    a('s_add_u32 s81, s81, 8192')
    vm = VM()

    def dmax(jb):
        sl = (jb & 3) * SL
        return [['s_add_u32 m0, s80, %d' % (sl + n * 1024), 's_mov_b32 s6, %d' % (jb * 128),
                 'buffer_load_dwordx4 v%d, %s, s6 offen lds' % (10 + n, X), jb] for n in range(2)]

    def dmaw(jb):
        sl = (jb & 3) * SL
        return [['s_add_u32 m0, s81, %d' % (sl + n * 1024), 's_mov_b32 s6, %d' % (jb * 81920),
                 'buffer_load_dwordx4 v%d, %s, s6 offen lds' % (12 + n, W), jb] for n in range(3)]

    for d in dmax(0):
        emit(a, vm, d)
    for n in range(3):
        a('v_add_u32 v2, %d, v0' % (64 * n))
        divc(a, 2, 3, 4)
        a('v_min_u32 v4, 9, v4')
        a('v_mul_u32_u24 v3, 1280, v3')
        a('v_lshl_add_u32 v3, v4, 4, v3')
        a('v_add_u32 v%d, s4, v3' % (12 + n))
    for d in dmaw(0) + sum([dmax(jb) + dmaw(jb) for jb in range(1, 4)], []):
        emit(a, vm, d)
    x_raddr(a, 16, '0', 2, 3)
    for s in range(4):
        a('v_add_u32 v%d, %d, v%d' % (20 + s, 2 * SL, 16 + s))
    tr_lane(a, 2, 3, 8)
    a('v_mul_u32_u24 v2, 192, v2')
    a('v_add_u32 v2, v2, v3')
    a('v_bfe_u32 v3, v0, 4, 1')
    a('v_lshl_add_u32 v2, v3, 5, v2')
    a('s_mul_i32 s4, s3, 40')
    a('s_add_u32 s4, s4, 8192')
    a('v_add_u32 v24, s4, v2')
    a('v_add_u32 v25, %d, v24' % (2 * SL))
    sel_ones(a, 4, 2, 3)
    for r in list(range(32, 64)) + [26, 27, 28, 29]:
        a('v_mov_b32 v%d, 0' % r)

    for jb in range(11):
        if jb < 10:
            a('s_waitcnt vmcnt(%d) lgkmcnt(0)' % vm.cnt(jb))
        else:
            a('s_waitcnt lgkmcnt(0)')
        a('s_barrier')
        if jb in (0, 4):
            stamp(a, 1 if jb == 0 else 2)
        rd = []
        pend = []
        if jb < 10:
            sl = (jb & 1) * SL
            hi = (jb & 2) != 0
            b = 64 + 48 * (jb & 1)
            for s in range(4):
                for t in range(2):
                    rd.append('ds_read_b128 %s, v%d offset:%d' % (vr(b + 8 * s + 4 * t, 4), (20 if hi else 16) + s, sl + t * 4096))
                for u in range(2):
                    rd.append('ds_read_b64_tr_b16 %s, v%d offset:%d' % (vr(b + 32 + 4 * s + 2 * u, 2), 25 if hi else 24, sl + s * 3072 + u * 768))
            if 1 <= jb <= 6:
                pend = dmax(jb + 3) + dmaw(jb + 3)
            if jb == 7:
                pend = [[nonce_load(a, 30), 'n']]
        if jb == 0:
            for y in rd:
                a(y)
            continue
        b = 64 + 48 * ((jb - 1) & 1)
        k = 0
        for s in range(4):
            wf = b + 32 + 4 * s
            for t in range(2):
                mfma(a, 32 + 16 * t, wf, b + 8 * s + 4 * t)
                if pend:
                    emit(a, vm, pend.pop(0))
                for y in rd[2 * k:2 * k + 1]:
                    a(y)
                if t == 0:
                    rowsum(a, 26, wf, 4)
                for y in rd[2 * k + 1:2 * k + 2]:
                    a(y)
                k += 1
    PRIV = 57344
    FLAGL = 59392
    a('s_lshl_b32 s5, s3, 7')
    a('s_add_u32 s5, s5, %d' % PRIV)
    rowsum_store(a, 26, 's5', 2, 3)
    a('v_and_b32 v4, 31, v0')
    a('v_lshrrev_b32 v7, 5, v0')
    a('v_lshl_add_u32 v7, v7, 4, s5')
    a('v_mov_b32 v5, 0')
    a('v_mov_b32 v29, %d' % FLAGL)
    a('ds_write_b32 v29, v5')
    a('s_waitcnt lgkmcnt(0)')
    for q in range(3):
        a('ds_read_b128 %s, v7 offset:%d' % (vr(64 + 4 * q, 4), 32 * q))
    stamp(a, 3)
    a('s_cmp_lg_u32 s3, 0')
    a('s_cbranch_scc1 L_a_polled')
    a('s_waitcnt vmcnt(0)')
    nonce_get(a, 30, True)
    a('s_mov_b32 s98, 0x%x' % KFLAG)
    poll(a, 's98', '-1', optional=False)
    a('L_a_polled:')
    a('v_lshlrev_b32 v10, 4, v0')
    a('v_lshlrev_b32 v11, 3, v0')
    a('s_mul_i32 s80, s3, 7168')
    a('s_lshl_b32 s4, s76, 10')
    a('s_add_u32 s4, s4, 0x%x' % STATS)
    a('v_lshlrev_b32 v4, 4, v4')
    a('s_mov_b32 s82, s80')
    a('s_waitcnt lgkmcnt(0)')
    a('s_barrier')
    stamp(a, 4)

    def kvdma_groups(slot, soff_reg):
        g = []
        for i in range(7):
            x = ['s_add_u32 m0, s80, %d' % (slot * 28672 + (i >> 2) * 4096)]
            x += ['buffer_load_dwordx4 v10, %s, %s offen offset:%d sc1 lds' % (KVR, soff_reg, (i & 3) * 1024)]
            if i == 3:
                x += ['s_add_u32 %s, %s, 4096' % (soff_reg, soff_reg)]
            if i == 6:
                x += ['s_add_u32 %s, %s, %d' % (soff_reg, soff_reg, 28672 - 4096)]
            g.append(x)
        return g

    def kvdma_list(slot, soff_reg):
        return sum(kvdma_groups(slot, soff_reg), [])

    def kv_start():
        for x in kvdma_list(0, 's82') + kvdma_groups(1, 's82')[0]:
            a(x)

    a('buffer_load_dwordx2 v[80:81], v4, %s, s4 offen sc1' % WSR)
    a('buffer_load_dwordx2 v[82:83], v4, %s, s4 offen offset:512 sc1' % WSR)
    kv_start()
    a('s_mov_b32 s4, 0x%x' % f2u(QS))
    a('s_waitcnt vmcnt(8)')
    Q1 = [160, 166]
    Q2 = [164, 170]
    a('v_cmp_gt_u32 s[84:85], 32, v0')
    for t in range(2):
        a('v_mul_f32 v%d, s4, v%d' % (81 + 2 * t, 81 + 2 * t))
        for i in range(12):
            a('v_fma_f32 v%d, v%d, v%d, v%d' % (32 + 16 * t + i, 80 + 2 * t, 64 + i, 32 + 16 * t + i))
        for i in range(12):
            a('v_mul_f32 v%d, v%d, v%d' % (32 + 16 * t + i, 81 + 2 * t, 32 + 16 * t + i))
        for i in range(6):
            a('v_cvt_pk_bf16_f32 v%d, v%d, v%d' % (Q1[t] + i, 32 + 16 * t + 2 * i, 33 + 16 * t + 2 * i))
        for i in range(2):
            a('v_cndmask_b32 v%d, 0, v%d, s[84:85]' % (Q2[t] + i, Q2[t] + i))
    O = [32, 48]
    S = [64, 80]
    P = [96, 104]
    K1 = [112, 116]
    K2 = [120, 122]
    V = [124, 132]
    M = [12, 13]

    def rdK(buf, off):
        return ['ds_read_b128 %s, v10 offset:%d' % (vr(K1[buf], 4), off),
                'ds_read_b64 %s, v11 offset:%d' % (vr(K2[buf], 2), off + 1024)]

    def rdV(buf, off):
        return ['ds_read_b128 %s, v10 offset:%d' % (vr(V[buf], 4), off + 1536),
                'ds_read_b128 %s, v10 offset:%d' % (vr(V[buf] + 4, 4), off + 2560)]

    def smf(dst, kb, q):
        return ['%s %s, %s, %s, 0' % (MF16, vr(dst, 16), vr(K1[kb], 4), vr(Q1[q], 4)),
                '%s %s, %s, %s, %s' % (MF8, vr(dst, 16), vr(K2[kb], 2), vr(Q2[q], 2), vr(dst, 16))]

    def pvf(q, vb):
        return ['%s %s, %s, %s, %s' % (MF16, vr(O[q], 16), vr(V[vb] + 4 * i, 4), vr(P[q] + 4 * i, 4), vr(O[q], 16)) for i in range(2)]

    def maxtree(m, s, first):
        if first:
            a('v_max3_f32 v%d, v%d, v%d, v%d' % (m, s, s + 1, s + 2))
            a('v_max_f32 v%d, v%d, v%d' % (m, m, s + 3))
            k = 4
        else:
            k = 0
        while k < 16:
            a('v_max3_f32 v%d, v%d, v%d, v%d' % (m, m, s + k, s + k + 1))
            k += 2

    a('s_mov_b32 s83, 0')
    a('s_waitcnt vmcnt(1)')
    a('s_barrier')
    stamp(a, 5)
    for x in rdK(0, 0) + rdK(1, 3584):
        a(x)
    for r in list(range(P[1], P[1] + 8)) + list(range(V[1], V[1] + 8)):
        a('v_mov_b32 v%d, 0' % r)
    a('s_waitcnt lgkmcnt(0)')
    for kb, q, d in ((0, 0, S[0]), (0, 1, S[1]), (1, 0, O[0]), (1, 1, O[1])):
        for x in smf(d, kb, q):
            a(x)
    maxtree(M[0], S[0], True)
    maxtree(M[1], S[1], True)
    maxtree(M[0], O[0], False)
    maxtree(M[1], O[1], False)
    a('v_add_f32 v%d, 0x%x, v%d' % (M[0], f2u(OFFSET), M[0]))
    a('v_add_f32 v%d, 0x%x, v%d' % (M[1], f2u(OFFSET), M[1]))
    a('L_a_restart:')
    for x in rdK(0, 0) + rdV(0, 0):
        a(x)
    a('s_mov_b32 s4, 0xffff0000')
    for q in range(2):
        m = M[q]
        a('v_mov_b32 v2, v%d' % m)
        a('v_permlane32_swap_b32 v%d, v2' % m)
        a('v_max_f32 v%d, v%d, v2' % (m, m))
        a('v_sub_f32 v2, 0, v%d' % m)
        a('v_and_b32 v3, s4, v2')
        a('v_sub_f32 v2, v2, v3')
        a('v_and_b32 v4, s4, v2')
        a('v_sub_f32 v2, v2, v4')
        a('v_lshrrev_b32 v3, 16, v3')
        a('v_or_b32 v3, v3, v4')
        a('v_lshrrev_b32 v2, 16, v2')
        a('v_cndmask_b32 v%d, v3, v%d, s[84:85]' % (Q2[q], Q2[q]))
        a('v_cndmask_b32 v%d, v2, v%d, s[84:85]' % (Q2[q] + 1, Q2[q] + 1))
        if q == 0:
            a('s_waitcnt lgkmcnt(0)')
            a('s_nop 0')
            for x in smf(S[0], 0, 0):
                a(x)
    for r in range(32, 64):
        a('v_mov_b32 v%d, 0' % r)
    stamp(a, 6)
    if STAMPS[0]:
        a('s_memtime s[100:101]')
        a('s_waitcnt lgkmcnt(0)')
        a('v_writelane_b32 v15, s100, 12')
    a('s_mov_b32 s86, 4')
    a('.p2align 6')
    a('L_a_loop:')
    pat = OPT.get('pat', 'eeMLLeeceeceMeceeceMXeceeceeMwDcc')
    order = [int(ch) for ch in str(OPT.get('order', 'o0123'))[1:]]
    assert pat.count('e') == 16 and pat.count('c') == 8 and pat.count('M') == 4
    sched = {}
    step = OPT.get('dstep', 3)
    for base, sl in ((15, 0), (31, 1)):
        for i, g in enumerate(kvdma_groups(sl, 's82')):
            sched[(base + (i * step) // 2) % 32] = g
    for j in range(16):
        off1 = (((j + 1) >> 3) & 1) * 28672 + ((j + 1) & 7) * 3584
        for q in range(2):
            extra = list(sched.get(2 * j + q, []))
            if q == 0:
                if (j & 7) == 7:
                    a('s_waitcnt vmcnt(0) lgkmcnt(0)')
                    a('s_barrier')
                rd = rdK((j + 1) & 1, off1)
                ms = smf(S[1], j & 1, 1) + pvf(1, (j - 1) & 1)
            else:
                rd = rdV((j + 1) & 1, off1)
                ms = smf(S[0], (j + 1) & 1, 0) + pvf(0, j & 1)
            ms = [ms[i] for i in order]
            e = c = 0
            for x in pat:
                if x == 'M':
                    a(ms.pop(0))
                elif x == 'e':
                    a('v_exp_f32 v%d, v%d' % (S[q] + e, S[q] + e))
                    e += 1
                elif x == 'c':
                    assert 2 * c + 1 < e
                    a('v_cvt_pk_bf16_f32 v%d, v%d, v%d' % (P[q] + c, S[q] + 2 * c, S[q] + 2 * c + 1))
                    c += 1
                elif x == 'L':
                    a(rd.pop(0))
                elif x == 'w':
                    if q == 0:
                        a('s_waitcnt lgkmcnt(0)')
                elif x == 'N':
                    a('s_nop 0')
                elif x == 'X':
                    if extra:
                        a(extra.pop(0))
                elif x == 'D':
                    for y in extra:
                        a(y)
                    extra = []
            assert not rd and not extra
    if STAMPS[0] and OPT.get('loopstamps'):
        a('s_memrealtime s[100:101]')
        a('s_sub_u32 m0, 11, s86')
        a('s_waitcnt lgkmcnt(0)')
        a('v_writelane_b32 v15, s100, m0')
    a('s_sub_u32 s86, s86, 1')
    a('s_cmp_lg_u32 s86, 0')
    a('s_cbranch_scc1 L_a_loop')
    for x in pvf(1, 1):
        a(x)
    if STAMPS[0]:
        a('s_memtime s[100:101]')
        a('s_waitcnt lgkmcnt(0)')
        a('v_readlane_b32 s4, v15, 12')
        a('s_sub_u32 s4, s100, s4')
        a('v_writelane_b32 v15, s4, 12')
    stamp(a, 10)
    a('s_lshl_b32 s4, s76, 1')
    a('s_mul_i32 s4, s4, 40960')
    a('s_mul_i32 s5, s79, 5120')
    a('s_add_u32 s4, s4, s5')
    a('s_add_u32 s4, s4, 0x%x' % OF)
    a('s_lshl_b32 s5, s3, 10')
    a('s_add_u32 s5, s5, s4')
    a('s_and_b32 s6, s3, 1')
    a('s_lshl_b32 s6, s6, 9')
    a('s_lshr_b32 s7, s3, 1')
    a('s_lshl_b32 s7, s7, 3')
    a('s_add_u32 s6, s6, s7')
    a('s_add_u32 s6, s6, s4')
    a('s_add_u32 s6, s6, 4096')
    a('s_mov_b32 s8, 0x7f000000')
    for q in range(2):
        o = O[q]
        a('v_mov_b32 v2, v%d' % (o + 8))
        a('v_mov_b32 v3, v%d' % (o + 8))
        a('v_add_f32 v5, abs(v%d), abs(v%d)' % (o, o + 1))
        a('v_permlane32_swap_b32 v2, v3')
        a('v_rcp_f32 v3, v3')
        for i in range(2, 12):
            a('v_add_f32 v5, v5, abs(v%d)' % (o + i))
        a('v_cmp_gt_f32 s[%d:%d], s8, v5' % (10 + 2 * q, 11 + 2 * q))
        a('v_mov_b32 v2, v3')
        for i in range(0, 12, 2):
            a('v_pk_mul_f32 %s, %s, v[2:3]' % (vr(o + i, 2), vr(o + i, 2)))
        for i in range(6):
            a('v_cvt_pk_bf16_f32 v%d, v%d, v%d' % (64 + 8 * q + i, o + 2 * i, o + 2 * i + 1))
        a('buffer_store_dwordx4 %s, v10, %s, s5 offen sc1' % (vr(64 + 8 * q, 4), WSR))
        a('s_mov_b64 exec, s[84:85]')
        a('buffer_store_dwordx2 %s, v10, %s, s6 offen sc1' % (vr(68 + 8 * q, 2), WSR))
        a('s_mov_b64 exec, -1')
        if q == 0:
            a('s_add_u32 s5, s5, 40960')
            a('s_add_u32 s6, s6, 40960')
    a('s_and_b64 s[10:11], s[10:11], s[12:13]')
    a('s_cmp_eq_u64 s[10:11], -1')
    a('s_cbranch_scc1 L_a_ok')
    a('v_mov_b32 v2, 1')
    a('ds_write_b32 v29, v2')
    a('L_a_ok:')
    a('s_lshl_b32 s4, s76, 10')
    a('s_lshl_b32 s5, s79, 7')
    a('s_add_u32 s4, s4, s5')
    a('s_add_u32 s98, s4, 0x%x' % OFLAG)
    a('s_waitcnt vmcnt(0) lgkmcnt(0)')
    a('s_barrier')
    a('ds_read_b32 v2, v29')
    a('s_waitcnt lgkmcnt(0)')
    a('v_readfirstlane_b32 s4, v2')
    a('s_cmp_gt_u32 s4, s83')
    a('s_cbranch_scc1 L_a_fallback')
    a('s_cmp_lg_u32 s3, 0')
    a('s_cbranch_scc1 L_fin')
    publish(a, 's98')
    a('s_branch L_fin')
    a('L_a_fallback:')
    a('s_mov_b32 s83, 1')
    for q in range(2):
        a('v_mov_b32 v%d, 0xff800000' % M[q])
        for i in range(2):
            a('v_cndmask_b32 v%d, 0, v%d, s[84:85]' % (Q2[q] + i, Q2[q] + i))
    for r in list(range(P[1], P[1] + 8)) + list(range(V[1], V[1] + 8)):
        a('v_mov_b32 v%d, 0' % r)
    a('s_mov_b32 s82, s80')
    a('s_mov_b32 s86, 64')
    a('s_mov_b32 s87, 0')
    a('L_a_fb_loop:')
    a('buffer_load_dwordx4 %s, v10, %s, s87 offen sc1' % (vr(K1[0], 4), KVR))
    a('buffer_load_dwordx2 %s, v11, %s, s87 offen offset:1024 sc1' % (vr(K2[0], 2), KVR))
    a('s_waitcnt vmcnt(0)')
    for q in range(2):
        for x in smf(S[q], 0, q):
            a(x)
    for q in range(2):
        maxtree(M[q], S[q], False)
    a('s_add_u32 s87, s87, 3584')
    a('s_sub_u32 s86, s86, 1')
    a('s_cmp_lg_u32 s86, 0')
    a('s_cbranch_scc1 L_a_fb_loop')
    kv_start()
    a('s_waitcnt vmcnt(1)')
    a('s_barrier')
    a('s_branch L_a_restart')


def role_g1(a):
    XB = 32768
    ACC, WF, XF, CSA = 128, 64, 32, 8
    a('L_roleG1:')
    a('s_and_b32 s4, s2, 7')
    a('s_lshr_b32 s5, s2, 3')
    a('s_and_b32 s6, s4, 3')
    a('s_mul_i32 s6, s6, 27')
    a('s_add_u32 s6, s6, s5')
    a('s_lshr_b32 s79, s6, 2')
    a('s_and_b32 s6, s6, 3')
    a('s_and_b32 s4, s4, 4')
    a('s_add_u32 s76, s4, s6')
    if OPT.get('same'):
        a('s_mov_b32 s76, 0')
        a('s_mov_b32 s79, 0')
    a('s_lshr_b32 s78, s3, 1')
    a('s_cmp_eq_u32 s78, 0')
    a('s_cselect_b32 s44, s28, s30')
    a('s_cselect_b32 s45, s29, s31')
    a('s_mov_b32 s46, %d' % (640 * 3456))
    a('s_lshl_b32 s4, s76, 8')
    a('s_lshl_b32 s5, s3, 6')
    a('s_add_u32 s77, s4, s5')
    x_voff(a, 24, 25, 's77', 2, 3)
    a('v_lshrrev_b32 v2, 3, v0')
    a('v_mul_u32_u24 v2, 3456, v2')
    a('v_bfe_u32 v3, v0, 4, 1')
    a('s_lshl_b32 s4, s78, 1')
    a('v_or_b32 v3, s4, v3')
    a('v_lshlrev_b32 v3, 1, v3')
    a('v_and_b32 v4, 7, v0')
    a('v_xor_b32 v3, v3, v4')
    a('v_lshl_add_u32 v2, v3, 4, v2')
    a('s_and_b32 s4, s3, 1')
    a('s_mul_i32 s5, s4, %d' % (32 * 3456))
    a('s_lshl_b32 s6, s79, 7')
    a('s_add_u32 s5, s5, s6')
    a('v_add_u32 v26, s5, v2')
    a('s_lshl_b32 s81, s78, 13')
    a('s_lshl_b32 s4, s4, 12')
    a('s_add_u32 s81, s81, s4')
    a('s_mul_i32 s80, s3, 12288')
    a('s_add_u32 s80, s80, %d' % XB)
    vm = VM()

    def dmax(n):
        if n > 19:
            return []
        j, t = n >> 1, n & 1
        return [['s_add_u32 m0, s80, %d' % ((n % 3) * 4096 + m * 1024), 's_mov_b32 s4, %d' % ((32 * t + 8 * m) * 1280 + j * 128),
                 'buffer_load_dwordx4 v%d, %s, s4 offen lds' % (24 + (m & 1), X), ('x', n)] for m in range(4)]

    def dmaw(j):
        if j > 9:
            return []
        return [['s_add_u32 m0, s81, %d' % ((j & 1) * 16384 + n * 1024), 's_mov_b32 s4, %d' % ((64 * j + 8 * n) * 3456),
                 'buffer_load_dwordx4 v26, %s, s4 offen lds' % W, ('w', j)] for n in range(4)]

    for d in dmax(0) + dmaw(0) + dmax(1) + dmaw(1) + dmax(2):
        emit(a, vm, d)
    x_raddr(a, 20, 's80', 2, 3)
    tr_lane(a, 2, 3, 8)
    a('v_lshlrev_b32 v2, 7, v2')
    a('v_add_u32 v2, v2, v3')
    a('v_bfe_u32 v3, v0, 4, 1')
    a('v_lshl_add_u32 v2, v3, 13, v2')
    a('v_lshlrev_b32 v3, 1, v3')
    a('v_bfe_u32 v4, v0, 3, 1')
    a('v_or_b32 v3, v3, v4')
    a('v_xor_b32 v3, s3, v3')
    for c in range(4):
        a('v_xor_b32 v4, %d, v3' % c)
        a('v_lshl_add_u32 v%d, v4, 5, v2' % (16 + c))
    sel_ones(a, 4, 2, 3)
    for r in list(range(ACC, ACC + 128)) + list(range(CSA, CSA + 4)):
        a('v_mov_b32 v%d, 0' % r)

    def rdw(j, s, c):
        return ['ds_read_b64_tr_b16 %s, v%d offset:%d' % (vr(WF + 16 * s + 4 * c + 2 * u, 2), 16 + c, (j & 1) * 16384 + s * 2048 + u * 512) for u in range(2)]

    def rdx(n):
        return ['ds_read_b128 %s, v%d offset:%d' % (vr(XF + 16 * (n & 1) + 4 * s, 4), 20 + s, (n % 3) * 4096) for s in range(4)]

    a('s_waitcnt vmcnt(%d)' % vm.cnt(('w', 0)))
    a('s_barrier')
    stamp(a, 1)
    for y in rdx(0):
        a(y)
    for s in range(4):
        for c in range(4):
            for y in rdw(0, s, c):
                a(y)
    for n in range(20):
        j, t = n >> 1, n & 1
        xr = rdx(n + 1) if n < 19 else []
        if t == 0:
            if n < 19:
                a('s_waitcnt vmcnt(%d) lgkmcnt(12)' % vm.cnt(('x', n + 1)))
            dm = dict(zip((1, 4, 7, 10), dmax(n + 3)))
            dm.update(zip((12, 14), dmax(n + 4)[:2]))
        else:
            if n < 19:
                cw = vm.cnt(('w', j + 1))
                if vm.has(('x', n + 1)):
                    cw = vm.cnt(('x', n + 1))
                a('s_waitcnt vmcnt(%d)' % cw)
                a('s_barrier')
            if n == 9:
                stamp(a, 2, low=0)
            dm = dict(zip((1, 3, 6, 9), dmaw(j + 2)))
            dm.update(zip((11, 14), dmax(n + 3)[2:]))
            if n == 17:
                dm[5] = [nonce_load(a, 30), 'n']
        if OPT.get('g1nodma'):
            dm = {}
            for tg in [('x', n + 3), ('x', n + 4), ('w', j + 2)]:
                vm.issue(tg)
        k = 0
        for s in range(4):
            for c in range(4):
                if t == 0 and k == 8:
                    a('s_waitcnt lgkmcnt(4)')
                mfma(a, ACC + 64 * t + 16 * c, WF + 16 * s + 4 * c, XF + 16 * t + 4 * s)
                if t == 0 and k == 11:
                    a('s_waitcnt lgkmcnt(0)')
                if k in dm:
                    emit(a, vm, dm[k])
                if k < 4 and xr:
                    a(xr[k])
                if t == 1 and j < 9 and not OPT.get('g1nords'):
                    for y in rdw(j + 1, s, c):
                        a(y)
                if t == 0 and c == 1 and not OPT.get('g1nocs'):
                    rowsum(a, CSA, WF + 16 * s, 4)
                k += 1
    prio(a, 3)
    stamp(a, 3)
    CS = 0
    a('s_lshl_b32 s4, s3, 7')
    a('s_add_u32 s4, s4, %d' % CS)
    rowsum_store(a, CSA, 's4', 2, 3)
    a('v_and_b32 v4, 31, v0')
    a('s_lshl_b32 s4, s76, 2')
    a('s_add_u32 s4, s4, s3')
    a('s_waitcnt vmcnt(0)')
    nonce_get(a, 30, True)
    a('s_lshl_b32 s98, s4, 7')
    a('s_add_u32 s98, s98, 0x%x' % KFLAG)
    poll(a, 's98', '1', optional=False)
    a('s_lshl_b32 s4, s4, 10')
    a('s_add_u32 s4, s4, 0x%x' % STATS)
    a('v_lshlrev_b32 v4, 4, v4')
    a('buffer_load_dwordx4 v[32:35], v4, %s, s4 offen sc1' % WSR)
    a('buffer_load_dwordx4 v[36:39], v4, %s, s4 offen offset:512 sc1' % WSR)
    a('s_waitcnt lgkmcnt(0)')
    a('s_barrier')
    a('v_lshrrev_b32 v7, 5, v0')
    a('v_lshlrev_b32 v7, 4, v7')
    for c in range(4):
        a('s_xor_b32 s%d, s3, %d' % (8 + c, c))
        a('s_lshl_b32 s5, s%d, 7' % (8 + c))
        a('s_add_u32 s5, s5, %d' % CS)
        a('v_add_u32 v6, s5, v7')
        for q in range(4):
            a('ds_read_b128 %s, v6 offset:%d' % (vr(64 + 16 * c + 4 * q, 4), 32 * q))
    a('s_lshr_b32 s5, s77, 5')
    a('s_mul_i32 s5, s5, 108')
    a('s_lshl_b32 s6, s79, 2')
    a('s_add_u32 s5, s5, s6')
    for c in range(4):
        a('s_add_u32 s%d, s%d, s5' % (8 + c, 8 + c))
        a('s_lshl_b32 s%d, s%d, 10' % (8 + c, 8 + c))
        a('s_add_u32 s%d, s%d, 0x%x' % (8 + c, 8 + c, HF))
    a('v_lshlrev_b32 v8, 4, v0')
    a('s_waitcnt vmcnt(0) lgkmcnt(0)')
    stamp(a, 4)
    for t in range(2):
        st = 32 + 4 * t
        a('v_mul_f32 v40, 0x%x, v%d' % (f2u(C1), st + 1))
        a('v_mul_f32 v42, v%d, v%d' % (st + 1, st + 1))
        a('v_mul_f32 v42, v42, v40')
        a('v_mul_f32 v42, 0x%x, v42' % f2u(0.044715))
        a('v_mov_b32 v44, v%d' % (st + 3))
        a('v_mov_b32 v45, v%d' % (st + 3))
        a('v_mov_b32 v41, v40')
        a('v_mov_b32 v43, v42')
        a('v_mov_b32 v46, v%d' % st)
        a('v_mov_b32 v47, v%d' % st)
        for c in range(4):
            ac = ACC + 64 * t + 16 * c
            cs = 64 + 16 * c
            T = 48
            for i in range(0, 16, 2):
                a('v_pk_fma_f32 %s, %s, v[46:47], %s' % (vr(ac + i, 2), vr(cs + i, 2), vr(ac + i, 2)))
            for i in range(0, 8, 2):
                a('v_pk_mul_f32 %s, %s, %s' % (vr(T + i, 2), vr(ac + i, 2), vr(ac + i, 2)))
            for i in range(0, 8, 2):
                a('v_pk_fma_f32 %s, %s, v[42:43], v[40:41]' % (vr(T + i, 2), vr(T + i, 2)))
            for i in range(0, 8, 2):
                a('v_pk_mul_f32 %s, %s, %s' % (vr(T + i, 2), vr(T + i, 2), vr(ac + i, 2)))
            for i in range(8):
                a('v_exp_f32 v%d, v%d' % (T + i, T + i))
            for i in range(0, 8, 2):
                a('v_pk_mul_f32 %s, %s, %s' % (vr(ac + i, 2), vr(ac + i, 2), vr(ac + 8 + i, 2)))
            for i in range(0, 8, 2):
                a('v_pk_fma_f32 %s, %s, v[44:45], v[44:45]' % (vr(T + i, 2), vr(T + i, 2)))
            for i in range(8):
                a('v_rcp_f32 v%d, v%d' % (T + i, T + i))
            for i in range(0, 8, 2):
                a('v_pk_mul_f32 %s, %s, %s' % (vr(ac + i, 2), vr(ac + i, 2), vr(T + i, 2)))
            for i in range(4):
                a('v_cvt_pk_bf16_f32 v%d, v%d, v%d' % (ac + 8 + i, ac + 2 * i, ac + 2 * i + 1))
            a('buffer_store_dwordx4 %s, v8, %s, s%d offen sc1' % (vr(ac + 8, 4), WSR, 8 + c))
            if t == 0:
                a('s_add_u32 s%d, s%d, %d' % (8 + c, 8 + c, 108 * 1024))
    stamp(a, 5)
    a('s_lshl_b32 s4, s76, 12')
    a('s_lshl_b32 s5, s79, 7')
    a('s_add_u32 s4, s4, s5')
    a('s_add_u32 s4, s4, 0x%x' % HFLAG)
    a('s_waitcnt vmcnt(0)')
    a('s_barrier')
    a('s_cmp_lg_u32 s3, 0')
    a('s_cbranch_scc1 L_roleG2')
    publish(a, 's4')


def role_g2(a):
    ACC, WF = 176, 48
    HB = [128 + 8 * d for d in range(6)]
    OB = [96 + 8 * d for d in range(10)]
    a('L_roleG2:')
    stamp(a, 6)
    if OPT.get('noG2'):
        a('s_branch L_fin')
    a('s_and_b32 s4, s2, 7')
    a('s_lshr_b32 s5, s2, 3')
    a('s_and_b32 s78, s5, 1')
    a('s_bfe_u32 s79, s5, 0x20001')
    a('s_lshr_b32 s5, s5, 3')
    a('s_lshl_b32 s4, s4, 2')
    a('s_add_u32 s76, s4, s5')
    a('s_mov_b32 s44, s32')
    a('s_mov_b32 s45, s33')
    a('s_mov_b32 s46, %d' % (1728 * 1280))
    a('s_mul_i32 s77, s79, 320')
    a('s_lshl_b32 s4, s78, 7')
    a('s_add_u32 s77, s77, s4')
    for n in range(3):
        a('v_add_u32 v2, %d, v0' % (64 * n))
        divc(a, 2, 3, 4)
        a('v_lshl_add_u32 v4, v4, 4, s77')
        a('v_mul_u32_u24 v5, 1280, v3')
        a('v_add_u32 v%d, v4, v5' % (20 + n))
        a('v_lshrrev_b32 v5, 2, v3')
        a('v_mul_u32_u24 v5, 20, v5')
        a('v_and_b32 v3, 3, v3')
        a('v_add3_u32 v5, v5, v3, 16')
        a('v_mul_u32_u24 v5, 1280, v5')
        a('v_add_u32 v%d, v4, v5' % (24 + n))
    a('s_mul_i32 s80, s3, 20480')
    a('s_mul_i32 s81, s3, %d' % (27 * 16 * 1280))
    a('s_mul_i32 s82, s3, %d' % (160 * 1280))
    a('s_lshl_b32 s5, s76, 1')
    a('s_add_u32 s84, s5, s78')
    a('s_xor_b32 s85, s84, 1')
    a('s_add_u32 s6, s78, 0')
    a('s_add_u32 s7, s78, 1')
    a('s_xor_b32 s8, s78, 1')
    a('s_lshl_b32 s8, s8, 1')
    tiles = ((84, 6), (84, 7), (84, 8), (85, 6), (85, 7))
    for k, (T, c) in enumerate(tiles):
        a('s_mul_i32 s%d, s%d, %d' % (88 + k, T, 32 * 1280))
        a('s_lshl_b32 s4, s%d, 6' % c)
        a('s_add_u32 s%d, s%d, s4' % (88 + k, 88 + k))
        a('s_add_u32 s%d, s%d, s77' % (88 + k, 88 + k))
    a('v_lshrrev_b32 v2, 3, v0')
    a('s_lshl_b32 s4, s3, 3')
    a('v_add_u32 v2, s4, v2')
    a('v_and_b32 v3, 7, v0')
    a('v_mul_u32_u24 v28, 1280, v2')
    a('v_lshl_add_u32 v28, v3, 3, v28')
    a('v_xor_b32 v3, v3, v2')
    a('v_and_b32 v3, 7, v3')
    a('v_lshlrev_b32 v29, 7, v2')
    a('v_lshl_add_u32 v29, v3, 4, v29')
    tr_lane(a, 2, 3, 4)
    a('v_mul_u32_u24 v2, 192, v2')
    a('v_add_u32 v2, v2, v3')
    a('v_bfe_u32 v3, v0, 4, 1')
    a('v_lshl_add_u32 v2, v3, 5, v2')
    a('v_add_u32 v2, s80, v2')
    for c in range(3):
        a('s_lshl_b32 s4, s%d, 6' % (6 + c))
        a('v_add_u32 v%d, s4, v2' % (16 + c))
    a('v_lshlrev_b32 v27, 4, v0')
    a('v_and_b32 v2, 31, v0')
    a('v_lshrrev_b32 v3, 5, v0')
    a('v_xor_b32 v3, v3, v0')
    a('v_and_b32 v3, 7, v3')
    a('v_lshlrev_b32 v2, 7, v2')
    a('v_add_u32 v2, s80, v2')
    for q in range(4):
        a('v_xor_b32 v4, %d, v3' % (2 * q))
        a('v_lshl_add_u32 v%d, v4, 4, v2' % (40 + q))
    a('v_add_u32 v44, 61440, v29')
    prio(a, 0)
    for k, T in enumerate((84, 85)):
        a('s_mul_i32 s%d, s%d, %d' % (94 + k, T, 108 * 1024))
        a('s_mul_i32 s4, s3, %d' % (27 * 1024))
        a('s_add_u32 s%d, s%d, s4' % (94 + k, 94 + k))
        a('s_add_u32 s%d, s%d, 0x%x' % (94 + k, 94 + k, HF))
        a('s_mul_i32 s%d, s%d, 40960' % (96 + k, T))
        a('s_mul_i32 s4, s3, 10240')
        a('s_add_u32 s%d, s%d, s4' % (96 + k, 96 + k))
        a('s_add_u32 s%d, s%d, 0x%x' % (96 + k, 96 + k, OF))
    vm = VM()
    N = 37

    def dmaw(i):
        o = []
        if i >= N:
            return o
        for n in range(3):
            m0 = 's_add_u32 m0, s80, %d' % ((i % 6) * 3072 + n * 1024)
            if i < 27:
                o.append([m0, 's_add_u32 s4, s81, %d' % (i * 16 * 1280), 'buffer_load_dwordx4 v%d, %s, s4 offen lds' % (20 + n, W), ('w', i)])
            else:
                g, e = divmod(i - 27, 5)
                if e < 4:
                    o.append([m0, 's_add_u32 s4, s82, %d' % ((80 * g + 20 * e) * 1280), 'buffer_load_dwordx4 v%d, %s, s4 offen lds' % (20 + n, W2), ('w', i)])
                else:
                    o.append([m0, 's_add_u32 s4, s82, %d' % (80 * g * 1280), 'buffer_load_dwordx4 v%d, %s, s4 offen lds' % (24 + n, W2), ('w', i)])
        return o

    def ldh(i):
        return [['s_add_u32 s4, s%d, %d' % (94 + k, (i >> 2) * 4096),
                 'buffer_load_dwordx4 %s, v27, %s, s4 offen offset:%d sc1' % (vr(HB[i % 6] + 4 * k, 4), WSR, (i & 3) * 1024), ('a', i)] for k in range(2)]

    def rdw(i):
        b = WF + 12 * (i & 3)
        return ['ds_read_b64_tr_b16 %s, v%d offset:%d' % (vr(b + 4 * c + 2 * u, 2), 16 + c, (i % 6) * 3072 + u * 1536) for c in range(3) for u in range(2)]

    for i in range(5):
        for d in dmaw(i):
            emit(a, vm, d)
    for k in range(5):
        a('buffer_load_dwordx2 %s, v28, %s, s%d offen' % (vr(30 + 2 * k, 2), X, 88 + k))
    a('s_lshr_b32 s4, s76, 2')
    a('s_lshl_b32 s4, s4, 12')
    a('s_mul_i32 s5, s3, 27')
    a('s_lshr_b32 s5, s5, 2')
    a('s_lshl_b32 s5, s5, 7')
    a('s_add_u32 s4, s4, s5')
    a('s_add_u32 s98, s4, 0x%x' % HFLAG)
    a('s_mul_i32 s5, s3, 3')
    a('s_and_b32 s5, s5, 2')
    a('s_lshl_b32 s5, s5, 6')
    a('s_or_b32 s7, s5, 0x7f')
    stamp(a, 7, low=0)
    poll(a, 's98', 's7', low=0)
    vm.q = []
    for i in range(5):
        for d in ldh(i):
            emit(a, vm, d)
    stamp(a, 8, low=0)
    for y in rdw(0):
        a(y)
    order = ((0, 0), (1, 0), (0, 1), (1, 1), (0, 2))
    for i in range(27):
        n = None
        for tg in (('w', i + 1), ('a', i)):
            if vm.has(tg):
                n = vm.cnt(tg)
        if n is not None:
            a('s_waitcnt vmcnt(%d)' % n)
        rd = rdw(i + 1)
        pend = dmaw(i + 5) + (ldh(i + 5) if i + 5 < 27 else [])
        b = WF + 12 * (i & 3)
        for k, (T, c) in enumerate(order):
            if k in (0, 2, 4):
                a('s_waitcnt lgkmcnt(4)')
            kk = c if T == 0 else 3 + c
            mfma(a, ACC + 16 * kk, b + 4 * c, HB[i % 6] + 4 * T, c='0' if i == 0 else None)
            if pend:
                emit(a, vm, pend.pop(0))
            if k in (0, 2, 4):
                a(rd.pop(0))
                a(rd.pop(0))
        if i == 13:
            stamp(a, 9, low=0)
    stamp(a, 10, low=0)
    for d in dmaw(32):
        emit(a, vm, d)
    a('s_waitcnt vmcnt(%d)' % vm.cnt(('w', 30)))
    for i in range(28, 31):
        for y in rdw(i):
            a(y)
    a('s_waitcnt lgkmcnt(0)')
    for i in range(33, 37):
        for d in dmaw(i):
            emit(a, vm, d)
    a('s_lshl_b32 s4, s76, 10')
    a('s_lshl_b32 s5, s3, 8')
    a('s_add_u32 s4, s4, s5')
    a('s_add_u32 s98, s4, 0x%x' % OFLAG)
    stamp(a, 11, low=0)
    poll(a, 's98', '3', low=3)
    for i in range(10):
        for k in range(2):
            if (i & 3) == 0 and i:
                a('s_add_u32 s%d, s%d, 4096' % (96 + k, 96 + k))
            a('buffer_load_dwordx4 %s, v27, %s, s%d offen offset:%d sc1' % (vr(OB[i] + 4 * k, 4), WSR, 96 + k, (i & 3) * 1024))
    stamp(a, 12)
    for i in range(10):
        if i < 4:
            a('s_waitcnt vmcnt(%d)' % (18 - 2 * i))
        else:
            a('s_waitcnt vmcnt(%d) lgkmcnt(%d)' % (18 - 2 * i, min(12, 6 * max(0, min(9, i + 3) - i))))
        b = WF + 12 * ((27 + i) & 3)
        for k, (T, c) in enumerate(order):
            kk = c if T == 0 else 3 + c
            mfma(a, ACC + 16 * kk, b + 4 * c, OB[i] + 4 * T)
        if i + 4 < 10:
            for y in rdw(27 + i + 4):
                a(y)
    for k in range(5):
        for q in range(4):
            a('ds_write_b128 v%d, %s offset:%d' % (40 + q, vr(ACC + 16 * k + 4 * q, 4), k * 4096))
    a('s_waitcnt lgkmcnt(0)')
    a('s_barrier')
    for k in range(5):
        for w in range(4):
            if w < 3:
                a('ds_read_b128 %s, v29 offset:%d' % (vr(64 + 16 * k + 4 * w, 4), w * 20480 + k * 4096))
            else:
                a('ds_read_b128 %s, v44 offset:%d' % (vr(64 + 16 * k + 4 * w, 4), k * 4096))
    a('s_mov_b32 s4, 0xffff0000')
    for k in range(5):
        b = 64 + 16 * k
        a('v_lshlrev_b32 v48, 16, v%d' % (30 + 2 * k))
        a('v_and_b32 v49, s4, v%d' % (30 + 2 * k))
        a('v_lshlrev_b32 v50, 16, v%d' % (31 + 2 * k))
        a('v_and_b32 v51, s4, v%d' % (31 + 2 * k))
        a('s_waitcnt lgkmcnt(%d)' % min(15, 4 * (4 - k)))
        for h in range(2):
            a('v_pk_add_f32 %s, %s, %s' % (vr(b + 2 * h, 2), vr(b + 2 * h, 2), vr(b + 4 + 2 * h, 2)))
            a('v_pk_add_f32 %s, %s, %s' % (vr(b + 8 + 2 * h, 2), vr(b + 8 + 2 * h, 2), vr(b + 12 + 2 * h, 2)))
        for h in range(2):
            a('v_pk_add_f32 %s, %s, %s' % (vr(b + 2 * h, 2), vr(b + 2 * h, 2), vr(48 + 2 * h, 2)))
        for h in range(2):
            a('v_pk_add_f32 %s, %s, %s' % (vr(b + 2 * h, 2), vr(b + 2 * h, 2), vr(b + 8 + 2 * h, 2)))
        a('v_cvt_pk_bf16_f32 v%d, v%d, v%d' % (b + 4, b, b + 1))
        a('v_cvt_pk_bf16_f32 v%d, v%d, v%d' % (b + 5, b + 2, b + 3))
        a('buffer_store_dwordx2 %s, v28, %s, s%d offen' % (vr(b + 4, 2), OUT, 88 + k))
    if OPT.get('noA') or OPT.get('noG1'):
        a('s_branch L_fin')
        a('L_idle:')
        for i in range(3):
            a('s_sleep 127')
    a('L_fin:')
    stamp_flush(a)
    a('L_end:')
    a('s_endpgm')


HEAD = open('cdna_kernels/%s.s.ref' % NAME).read().split('; Override launch')[0]


def build(verbose=False):
    uid[0] = 0
    a = Asm()
    prologue(a)
    role_kv(a)
    role_a(a)
    role_g1(a)
    role_g2(a)
    n = a.fix(verbose)
    s = HEAD
    s += '; @launch grid=(512,1,1) block=(256,1,1) lds=%d\n' % LDS
    s += '.amdgcn_target "amdgcn-amd-amdhsa--gfx950"\n.text\n.globl %s_kernel\n.p2align 8\n.type %s_kernel,@function\n%s_kernel:\n' % (NAME, NAME, NAME)
    s += a.text()
    s += '''.section .rodata,"a"
.p2align 6
.amdhsa_kernel %s_kernel
  .amdhsa_next_free_vgpr 256
  .amdhsa_next_free_sgpr 102
  .amdhsa_accum_offset 256
  .amdhsa_group_segment_fixed_size 0
  .amdhsa_kernarg_size 96
  .amdhsa_user_sgpr_count 2
  .amdhsa_user_sgpr_kernarg_segment_ptr 1
  .amdhsa_system_sgpr_workgroup_id_x 1
.end_amdhsa_kernel
''' % NAME
    return s, n


if __name__ == '__main__':
    STAMPS[0] = '-s' in sys.argv
    for x in sys.argv[1:]:
        if '=' in x:
            k, v = x.split('=')
            OPT[k] = int(v) if v.lstrip('-').isdigit() else v
    s, n = build(verbose='-v' in sys.argv)
    out = 'cdna_kernels/%s.s' % NAME if 'out' not in OPT else 'gen/%s.s' % OPT['out']
    open(out, 'w').write(s)
    print('nops inserted:', n, 'lines:', s.count('\n'))
```

```python
import sys, math, struct
sys.path.insert(0, 'gen')
from asmlib import Asm

NAME = 'parallel_sum__grouped_kv_mqa__geglu_ffn__prompt'
KVF, KVF_SZ = 0, 64 * 3584
STATS = 0x40000
KFLAG, HFLAG, OFLAG, WFLAG, NONCE = 0x80000, 0x88000, 0x90000, 0x98000, 0x53000
AFLAG = 0x9c000
OF, HF, WT = 0x100000, 0x400000, 0xB00000
WS_SZ = 0xE00000
LDS = 81920
SPIN = 400000


def f2u(x):
    return struct.unpack('<I', struct.pack('<f', x))[0]


LOG2E = 1.4426950408889634
C1 = -2.0 * LOG2E * math.sqrt(2.0 / math.pi)
C2 = C1 * 0.044715
QS = 20 ** -0.5 * LOG2E
OFFSET = 80.0

X, W, WSR, DBG, OUT, W2, KVR = 's[40:43]', 's[44:47]', 's[48:51]', 's[52:55]', 's[56:59]', 's[60:63]', 's[72:75]'
WD = 's[24:27]'


def vr(b, n=1):
    return 'v%d' % b if n == 1 else 'v[%d:%d]' % (b, b + n - 1)


class VM:
    def __init__(self):
        self.q = []

    def issue(self, tag):
        self.q.append(tag)

    def cnt(self, tag):
        idx = max(i for i, t in enumerate(self.q) if t == tag)
        n = len(self.q) - 1 - idx
        self.q = self.q[idx + 1:]
        assert n <= 63
        return n

    def has(self, tag):
        return tag in self.q


def srd(a, s, ptr, size):
    b = int(s[2:s.index(':')])
    a('s_mov_b32 s%d, s%d' % (b, ptr))
    a('s_mov_b32 s%d, s%d' % (b + 1, ptr + 1))
    a('s_mov_b32 s%d, 0x%x' % (b + 2, size))
    a('s_mov_b32 s%d, 0x00020000' % (b + 3))


uid = [0]


def spin_tail(a, L):
    a('s_sleep %d' % OPT.get('sleep', 4))
    a('s_sub_u32 s70, s70, 1')
    a('s_cmp_lg_u32 s70, 0')
    a('s_cbranch_scc1 %s' % L)
    a(L + '_done:')


def poll(a, soff, mask, optional=True, tmp=2, low=None, addr=None):
    if OPT.get('nopoll') and optional:
        a('s_waitcnt vmcnt(0)')
        return
    uid[0] += 1
    L = 'L_poll%d' % uid[0]
    a('s_mov_b32 s66, %s' % mask)
    a('s_mov_b32 s67, 0')
    a('s_mov_b32 s70, %d' % SPIN)
    if low is not None:
        a('s_waitcnt vmcnt(0)')
        prio(a, 3)
    if addr is None:
        addr = tmp + 1
        a('v_lshlrev_b32 v%d, 7, v0' % addr)
    a(L + ':')
    a('s_mov_b64 exec, s[66:67]')
    a('buffer_load_dword v%d, v%d, %s, %s offen sc1' % (tmp, addr, WSR, soff))
    a('s_mov_b64 exec, -1')
    a('s_waitcnt vmcnt(0)')
    a('v_cmp_eq_u32 vcc, s64, v%d' % tmp)
    a('s_and_b64 s[68:69], vcc, s[66:67]')
    a('s_cmp_eq_u64 s[68:69], s[66:67]')
    a('s_cbranch_scc1 %s_done' % L)
    spin_tail(a, L)
    if low is not None:
        prio(a, low)


def nonce_load(a, reg):
    return 'buffer_load_dword v%d, off, %s, 0 offset:128 sc1' % (reg, DBG)


def nonce_get(a, reg, loaded):
    uid[0] += 1
    L = 'L_poll%d' % uid[0]
    a('s_mov_b32 s70, %d' % SPIN)
    if loaded:
        a('v_readfirstlane_b32 s64, v%d' % reg)
        a('s_cmp_lg_u32 s64, 0')
        a('s_cbranch_scc1 %s_done' % L)
    a(L + ':')
    a(nonce_load(a, reg))
    a('s_waitcnt vmcnt(0)')
    a('v_readfirstlane_b32 s64, v%d' % reg)
    a('s_cmp_lg_u32 s64, 0')
    a('s_cbranch_scc1 %s_done' % L)
    spin_tail(a, L)


def publish(a, soff):
    a('v_mov_b32 v2, s64')
    a('s_mov_b64 exec, 1')
    a('buffer_store_dword v2, off, %s, %s sc1' % (WSR, soff))
    a('s_mov_b64 exec, -1')


def prio(a, p):
    a('s_setprio %d' % p)


def halves_sum(a, v, t):
    a('v_mov_b32 v%d, v%d' % (t, v))
    a('v_permlane32_swap_b32 v%d, v%d' % (v, t))
    a('v_add_f32 v%d, v%d, v%d' % (v, v, t))


def x_voff(a, d0, d1, srow, t0, t1):
    a('v_lshrrev_b32 v%d, 3, v0' % t0)
    a('v_add_u32 v%d, %s, v%d' % (t0, srow, t0))
    a('v_mul_u32_u24 v%d, 1280, v%d' % (t0, t0))
    a('v_lshrrev_b32 v%d, 4, v0' % t1)
    a('v_xor_b32 v%d, v0, v%d' % (t1, t1))
    a('v_and_b32 v%d, 7, v%d' % (t1, t1))
    a('v_lshl_add_u32 v%d, v%d, 4, v%d' % (d0, t1, t0))
    a('v_xor_b32 v%d, 4, v%d' % (t1, t1))
    a('v_lshl_add_u32 v%d, v%d, 4, v%d' % (d1, t1, t0))


def x_raddr(a, d, base, t0, t1):
    a('v_and_b32 v%d, 31, v0' % t0)
    a('v_lshrrev_b32 v%d, 5, v0' % t1)
    a('v_bfe_u32 v%d, v0, 1, 3' % d)
    a('v_xor_b32 v%d, v%d, v%d' % (t1, t1, d))
    a('v_lshlrev_b32 v%d, 7, v%d' % (t0, t0))
    a('v_add_u32 v%d, %s, v%d' % (t0, base, t0))
    for s in range(4):
        a('v_xor_b32 v%d, %d, v%d' % (d + s, 2 * s, t1))
        a('v_lshl_add_u32 v%d, v%d, 4, v%d' % (d + s, d + s, t0))


def tr_lane(a, drow, dcol, hmul):
    a('v_bfe_u32 v%d, v0, 2, 2' % drow)
    a('v_lshrrev_b32 v%d, 5, v0' % dcol)
    a('v_mul_u32_u24 v%d, %d, v%d' % (dcol, hmul, dcol))
    a('v_add_u32 v%d, v%d, v%d' % (drow, drow, dcol))
    a('v_and_b32 v%d, 3, v0' % dcol)
    a('v_lshlrev_b32 v%d, 3, v%d' % (dcol, dcol))


def divc(a, di, drow, dc, n=12):
    m = {12: 5462, 20: 3277}[n]
    assert all((i * m) >> 16 == i // n for i in range(320))
    a('v_mul_u32_u24 v%d, %d, v%d' % (drow, m, di))
    a('v_lshrrev_b32 v%d, 16, v%d' % (drow, drow))
    a('v_mul_u32_u24 v%d, %d, v%d' % (dc, n, drow))
    a('v_sub_u32 v%d, v%d, v%d' % (dc, di, dc))


MF16 = 'v_mfma_f32_32x32x16_bf16'
MF8 = 'v_mfma_f32_32x32x8_bf16'


def mfma(a, d, x, y, c=None, op=MF16):
    n = 4 if op == MF16 else 2
    a('%s %s, %s, %s, %s' % (op, vr(d, 16), vr(x, n), vr(y, n), vr(d, 16) if c is None else c))


STAMPS = [False]
OPT = {}


def stamp(a, i, low=None):
    if STAMPS[0]:
        a('s_waitcnt lgkmcnt(0)')
        a('s_memrealtime s[100:101]')
        a('s_waitcnt lgkmcnt(0)')
        if low is not None:
            prio(a, 3)
        a('v_writelane_b32 v15, s100, %d' % i)
        if low is not None:
            prio(a, low)


def stamp_flush(a):
    if STAMPS[0]:
        stamp(a, 15)
        a('s_memtime s[100:101]')
        a('s_waitcnt lgkmcnt(0)')
        a('v_writelane_b32 v15, s100, 14')
        a('s_mov_b64 exec, 0xffff')
        a('s_lshl_b32 s4, s99, 2')
        a('s_add_u32 s4, s4, s3')
        a('s_lshl_b32 s4, s4, 6')
        a('s_add_u32 s4, s4, 0x60000')
        a('buffer_store_dword v15, v1, %s, s4 offen' % WSR)


def emit(a, vm, d):
    for y in d[:-1]:
        a(y)
    vm.issue(d[-1])


MS = 'v_mfma_f32_16x16x32_bf16'


def sel_ones(a, d, t0, t1):
    a('v_and_b32 v%d, 15, v0' % t0)
    a('v_bfe_u32 v%d, v0, 4, 1' % t1)
    a('v_cmp_eq_u32 vcc, v%d, v%d' % (t0, t1))
    a('v_mov_b32 v%d, 0x3f803f80' % t0)
    for i in range(4):
        a('v_cndmask_b32 v%d, 0, v%d, vcc' % (d + i, t0))


def rowsum(a, d, frag, ones, first=False):
    a('%s %s, %s, %s, %s' % (MS, vr(d, 4), vr(frag, 4), vr(ones, 4), '0' if first else vr(d, 4)))


def rowsum_store(a, d, sbase, t0, t1):
    a('v_and_b32 v%d, 15, v0' % t0)
    a('v_lshrrev_b32 v%d, 4, v0' % t1)
    a('v_cmp_gt_u32 vcc, 2, v%d' % t0)
    a('v_lshl_add_u32 v%d, v%d, 2, v%d' % (t0, t0, t1))
    a('v_lshlrev_b32 v%d, 4, v%d' % (t0, t0))
    a('v_add_u32 v%d, %s, v%d' % (t0, sbase, t0))
    a('s_mov_b64 exec, vcc')
    a('ds_write_b128 v%d, %s' % (t0, vr(d, 4)))
    a('s_mov_b64 exec, -1')


def prologue(a):
    a('s_cmp_ge_u32 s2, 512')
    a('s_cbranch_scc1 L_end')
    a('s_load_dwordx16 s[16:31], s[0:1], 0')
    a('s_load_dwordx8 s[32:39], s[0:1], 64')
    a('v_lshrrev_b32 v1, 6, v0')
    a('v_and_b32 v0, 63, v0')
    a('v_readfirstlane_b32 s3, v1')
    a('v_lshlrev_b32 v1, 2, v0')
    a('s_waitcnt lgkmcnt(0)')
    srd(a, X, 16, 2048 * 1280)
    srd(a, WSR, 38, WS_SZ)
    srd(a, DBG, 36, 256)
    srd(a, OUT, 34, 2048 * 1280)
    srd(a, KVR, 38, KVF_SZ)
    srd(a, W, 18, 640 * 1280)
    if STAMPS[0]:
        a('s_mov_b32 s99, s2')
        a('v_mov_b32 v15, 0')
    stamp(a, 0)
    if STAMPS[0]:
        a('s_memtime s[100:101]')
        a('s_waitcnt lgkmcnt(0)')
        a('v_writelane_b32 v15, s100, 13')
    a('s_sub_u32 s4, s2, 216')
    a('s_cmp_lt_u32 s4, 32')
    a('s_cbranch_scc1 L_roleKV')
    a('s_cmp_lt_u32 s2, 256')
    a('s_cbranch_scc1 %s' % ('L_idle' if OPT.get('noA') else 'L_roleA'))
    a('s_sub_u32 s2, s2, 256')
    a('s_cmp_lt_u32 s2, 216')
    a('s_cbranch_scc1 %s' % ('L_idle' if OPT.get('noG1') else 'L_roleG1'))
    prio(a, 3)
    a('s_cmp_lg_u32 s2, 248')
    a('s_cbranch_scc1 L_getnonce')
    a('s_cmp_lg_u32 s3, 0')
    a('s_cbranch_scc1 L_getnonce')
    a('s_mov_b32 s4, 0x%x' % NONCE)
    a('buffer_load_dword v2, off, %s, s4 sc1' % WSR)
    a('s_waitcnt vmcnt(0)')
    a('v_add_u32 v2, 1, v2')
    a('v_max_u32 v2, 1, v2')
    a('s_mov_b64 exec, 1')
    a('buffer_store_dword v2, off, %s, 0 offset:128 sc1' % DBG)
    a('buffer_store_dword v2, off, %s, s4 sc1' % WSR)
    a('s_mov_b64 exec, -1')
    a('L_getnonce:')
    nonce_get(a, 2, False)
    a('s_lshl_b32 s4, s2, 7')
    a('s_add_u32 s98, s4, 0x%x' % (AFLAG - 216 * 128))
    if not OPT.get('noA'):
        poll(a, 's98', '1', optional=False)
    a('s_sub_u32 s12, s2, 216')
    a('s_lshl_b32 s13, s12, 2')
    a('s_add_u32 s13, s13, s3')
    a('s_cmp_lt_u32 s13, 148')
    a('s_cbranch_scc0 L_wt_done')
    a('s_sub_u32 s4, s13, 108')
    a('s_mul_i32 s5, s4, 52429')
    a('s_lshr_b32 s5, s5, 18')
    a('s_mul_i32 s6, s5, 5')
    a('s_sub_u32 s6, s4, s6')
    a('s_mul_i32 s5, s5, 80')
    a('s_mul_i32 s7, s6, 20')
    a('s_add_u32 s7, s7, s5')
    a('s_add_u32 s5, s5, 16')
    a('s_cmp_eq_u32 s6, 4')
    a('s_cselect_b32 s7, s5, s7')
    a('s_cselect_b32 s8, 20, 4')
    a('s_lshl_b32 s9, s13, 4')
    a('s_cmp_lt_u32 s13, 108')
    a('s_cselect_b32 s7, s9, s7')
    a('s_cselect_b32 s8, 4, s8')
    a('s_cselect_b32 s44, s32, s24')
    a('s_cselect_b32 s45, s33, s25')
    a('s_mov_b32 s9, %d' % (640 * 1280))
    a('s_cselect_b32 s46, %d, s9' % (1728 * 1280))
    a('s_mul_i32 s7, s7, 1280')
    a('s_mul_i32 s8, s8, 1280')
    a('s_mul_i32 s80, s3, 20480')
    a('v_lshlrev_b32 v27, 4, v0')
    tr_lane(a, 2, 3, 4)
    a('v_mul_u32_u24 v2, 1280, v2')
    a('v_add_u32 v2, v2, v3')
    a('v_bfe_u32 v3, v0, 4, 1')
    a('v_lshl_add_u32 v2, v3, 5, v2')
    a('v_add_u32 v16, s80, v2')
    prio(a, 0)
    for j in range(4):
        a('s_add_u32 m0, s80, %d' % (j * 5120))
        a('s_add_u32 s9, s7, 4096')
        for n in range(4):
            a('buffer_load_dwordx4 v27, %s, s7 offen offset:%d lds' % (W, n * 1024))
        a('s_add_u32 m0, s80, %d' % (j * 5120 + 4096))
        a('s_add_u32 s7, s7, s8')
        a('buffer_load_dwordx4 v27, %s, s9 offen lds' % W)
    a('s_mul_i32 s7, s13, 20480')
    a('s_add_u32 s7, s7, 0x%x' % WT)
    a('s_waitcnt vmcnt(0)')
    for ct in range(20):
        for u in range(2):
            a('ds_read_b64_tr_b16 %s, v16 offset:%d' % (vr(64 + 4 * ct + 2 * u, 2), ct * 64 + u * 10240))
    for ct in range(20):
        a('s_waitcnt lgkmcnt(%d)' % min(15, 38 - 2 * ct))
        a('buffer_store_dwordx4 %s, v27, %s, s7 offen offset:%d sc1' % (vr(64 + 4 * ct, 4), WSR, (ct & 3) * 1024))
        if (ct & 3) == 3:
            a('s_add_u32 s7, s7, 4096')
    a('L_wt_done:')
    a('s_lshl_b32 s4, s12, 7')
    a('s_add_u32 s4, s4, 0x%x' % WFLAG)
    a('s_waitcnt vmcnt(0)')
    a('s_barrier')
    prio(a, 3)
    a('s_cmp_lg_u32 s3, 0')
    a('s_cbranch_scc1 L_roleG2')
    publish(a, 's4')
    a('s_branch L_roleG2')


def rot_init(a, reg, rot, n, stride):
    a('s_mul_i32 %s, %s, %d' % (reg, rot, stride))


def rot_step(reg, n, stride):
    return ['s_add_u32 %s, %s, %d' % (reg, reg, stride), 's_cmp_eq_u32 %s, %d' % (reg, n * stride), 's_cselect_b32 %s, 0, %s' % (reg, reg)]


def role_kv(a):
    SL = 26624
    SC = 3 * SL
    a('L_roleKV:')
    prio(a, 3)
    a('s_and_b32 s5, s4, 7')
    a('s_lshr_b32 s4, s4, 3')
    a('s_lshl_b32 s5, s5, 2')
    a('s_add_u32 s76, s5, s4')
    a('s_lshl_b32 s77, s76, 6')
    a('s_and_b32 s78, s3, 1')
    a('s_lshr_b32 s79, s3, 1')
    a('s_cmp_eq_u32 s79, 0')
    a('s_cselect_b32 s44, s20, s22')
    a('s_cselect_b32 s45, s21, s23')
    a('s_mov_b32 s46, 25600')
    a('s_lshl_b32 s4, s3, 4')
    a('s_add_u32 s4, s4, s77')
    x_voff(a, 10, 11, 's4', 2, 3)
    a('v_add_u32 v11, 10240, v11')
    a('s_lshl_b32 s4, s78, 11')
    a('v_lshl_add_u32 v12, v0, 4, s4')
    a('s_lshl_b32 s80, s3, 11')
    a('s_mul_i32 s81, s79, 5120')
    a('s_add_u32 s81, s81, s4')
    a('s_add_u32 s81, s81, 16384')
    vm = VM()

    def dma(sb):
        sl = (sb % 3) * SL
        o = []
        for img in range(2):
            for n in range(2):
                o.append(['s_add_u32 m0, s80, %d' % (sl + img * 8192 + n * 1024), 's_mov_b32 s4, %d' % (sb * 256 + img * 128),
                          'buffer_load_dwordx4 v%d, %s, s4 offen lds' % (10 + n, X), sb])
        for i in range(3):
            o.append(['s_add_u32 m0, s81, %d' % sl, 's_mov_b32 s4, %d' % (sb * 5120),
                      'buffer_load_dwordx4 v12, %s, s4 offen offset:%d lds' % (W, i * 1024), sb])
        return o

    for sb in range(3):
        for d in dma(sb):
            emit(a, vm, d)
    a('s_lshl_b32 s4, s78, 12')
    x_raddr(a, 16, 's4', 2, 3)
    tr_lane(a, 2, 3, 8)
    a('v_mul_u32_u24 v2, 40, v2')
    a('v_and_b32 v4, 16, v0')
    a('v_cmp_ne_u32 vcc, 0, v4')
    a('v_cndmask_b32 v3, v3, 32, vcc')
    a('v_add_u32 v2, v2, v3')
    a('s_mul_i32 s4, s79, 5120')
    a('s_add_u32 s4, s4, 16384')
    a('v_add_u32 v20, s4, v2')
    a('v_mov_b32 v21, 0x3f803f80')
    sel_ones(a, 4, 2, 3)
    for r in list(range(22, 30)) + list(range(32, 64)):
        a('v_mov_b32 v%d, 0' % r)
    a('s_cmp_eq_u32 s79, 0')
    a('s_cbranch_scc0 L_kvV')
    vm0 = list(vm.q)
    for kind in range(2):
        vm.q = list(vm0)
        if kind == 1:
            a('L_kvV:')
        for sb in range(6):
            rd = []
            pend = []
            if sb < 5:
                sl = (sb % 3) * SL
                XF, WF = 64 + 64 * (sb & 1), 96 + 64 * (sb & 1)
                a('s_waitcnt vmcnt(%d) lgkmcnt(0)' % vm.cnt(sb))
                a('s_barrier')
                if sb in (0, 3):
                    stamp(a, 7 if sb == 0 else 8)
                for s in range(8):
                    rd.append('ds_read_b128 %s, v%d offset:%d' % (vr(XF + 4 * s, 4), 16 + (s & 3), sl + (s >> 2) * 8192))
                    rd.append('ds_read_b64_tr_b16 %s, v20 offset:%d' % (vr(WF + 4 * s, 2), sl + s * 640))
                    rd.append('ds_read_b64_tr_b16 %s, v20 offset:%d' % (vr(WF + 4 * s + 2, 2), sl + s * 640 + 160))
                if sb in (1, 2):
                    pend = dma(sb + 2)
                if sb == 3:
                    pend = [[nonce_load(a, 13), 'n']]
            else:
                a('s_waitcnt lgkmcnt(0)')
            if sb == 0:
                for y in rd:
                    a(y)
                continue
            XF, WF = 64 + 64 * ((sb - 1) & 1), 96 + 64 * ((sb - 1) & 1)
            for s in range(8):
                if kind == 0:
                    mfma(a, 32, WF + 4 * s, XF + 4 * s)
                else:
                    mfma(a, 32, XF + 4 * s, WF + 4 * s)
                if pend:
                    emit(a, vm, pend.pop(0))
                for y in rd[3 * s:3 * s + 1]:
                    a(y)
                rowsum(a, 26, WF + 4 * s, 4)
                for y in rd[3 * s + 1:3 * s + 2]:
                    a(y)
                if (s & 1) == kind:
                    mfma(a, 48, XF + 4 * s, XF + 4 * s)
                else:
                    rowsum(a, 22, XF + 4 * s, 4)
                for y in rd[3 * s + 2:3 * s + 3]:
                    a(y)
        stamp(a, 9)
        a('s_lshl_b32 s4, s78, 8')
        a('s_add_u32 s4, s4, %d' % SC)
        a('s_add_u32 s6, s4, %d' % (kind * 512))
        a('s_lshl_b32 s5, s3, 8')
        a('s_add_u32 s5, s5, %d' % (SC + 1024))
        rowsum_store(a, 22, 's6', 2, 3)
        rowsum_store(a, 26, 's5', 2, 3)
        a('v_and_b32 v4, 31, v0')
        for bit, n, st in ((0, 8, 1), (1, 4, 2), (3, 2, 4), (4, 1, 8)):
            a('v_and_b32 v2, %d, v0' % (1 << bit))
            a('v_cmp_ne_u32 vcc, 0, v2')
            for i in range(n):
                a('v_cndmask_b32 v%d, v%d, v%d, vcc' % (48 + 2 * st * i, 48 + 2 * st * i, 48 + 2 * st * i + st))
        a('v_lshlrev_b32 v4, 2, v4')
        a('v_bfe_u32 v2, v0, 2, 1')
        a('v_lshrrev_b32 v7, 5, v0')
        a('v_cmp_eq_u32 vcc, v2, v7')
        a('v_add_u32 v5, s6, v4')
        a('s_mov_b64 exec, vcc')
        a('ds_write_b32 v5, v48 offset:128')
        a('s_mov_b64 exec, -1')
        a('v_add_u32 v5, s4, v4')
        a('v_add_u32 v6, s5, v4')
        a('v_lshl_add_u32 v7, v7, 4, s5')
        a('s_waitcnt lgkmcnt(0)')
        a('s_barrier')
        a('ds_read2_b32 v[26:27], v5 offset1:32')
        a('ds_read2_b32 v[22:23], v5 offset0:128 offset1:160')
        if kind == 0:
            for q in range(3):
                a('ds_read_b128 %s, v7 offset:%d' % (vr(64 + 4 * q, 4), 32 * q))
        else:
            a('ds_read_b32 v24, v6')
        a('s_mov_b32 s4, 0x%x' % f2u(1.0 / 640))
        a('s_waitcnt lgkmcnt(0)')
        a('v_add_f32 v26, v26, v22')
        a('v_add_f32 v27, v27, v23')
        a('v_mul_f32 v26, s4, v26')
        a('v_mul_f32 v27, s4, v27')
        a('v_fma_f32 v27, -v26, v26, v27')
        a('v_max_f32 v27, 0, v27')
        a('v_add_f32 v27, 0x%x, v27' % f2u(1e-5))
        a('v_sqrt_f32 v30, v27')
        a('v_sub_f32 v28, 0, v26')
        a('v_rcp_f32 v29, v30')
        a('v_mov_b32 v31, v27')
        a('s_lshl_b32 s4, s76, 1')
        a('s_add_u32 s4, s4, s78')
        a('s_mul_i32 s5, s4, 3584')
        a('v_lshlrev_b32 v8, 4, v0')
        if kind == 0:
            a('s_lshl_b32 s4, s4, 9')
            a('s_add_u32 s4, s4, 0x%x' % STATS)
            a('v_lshlrev_b32 v4, 2, v4')
            a('buffer_store_dwordx4 v[28:31], v4, %s, s4 offen sc1' % WSR)
            for i in range(12):
                a('v_fma_f32 v%d, v28, v%d, v%d' % (32 + i, 64 + i, 32 + i))
            for i in range(12):
                a('v_mul_f32 v%d, v29, v%d' % (32 + i, 32 + i))
            for i in range(6):
                a('v_cvt_pk_bf16_f32 v%d, v%d, v%d' % (80 + i, 32 + 2 * i, 33 + 2 * i))
            a('v_cmp_lt_u32 vcc, 31, v0')
            a('v_mov_b32 v2, 0x3f80')
            a('v_cndmask_b32 v84, v84, v21, vcc')
            a('v_cndmask_b32 v85, v85, v2, vcc')
            a('v_lshlrev_b32 v9, 3, v0')
            a('buffer_store_dwordx4 v[80:83], v8, %s, s5 offen sc1' % WSR)
            a('buffer_store_dwordx2 v[84:85], v9, %s, s5 offen offset:1024 sc1' % WSR)
        else:
            a('v_mul_f32 v28, v28, v29')
            a('ds_write_b32 v6, v28')
            a('ds_write_b32 v6, v29 offset:128')
            a('s_waitcnt lgkmcnt(0)')
            for q in range(4):
                a('ds_read_b128 %s, v7 offset:%d' % (vr(64 + 4 * q, 4), 32 * q))
                a('ds_read_b128 %s, v7 offset:%d' % (vr(80 + 4 * q, 4), 128 + 32 * q))
            a('v_and_b32 v2, 31, v0')
            a('v_cmp_gt_u32 vcc, 20, v2')
            a('v_cmp_eq_u32 s[6:7], 20, v2')
            a('v_cndmask_b32 v3, 0, v21, s[6:7]')
            a('s_waitcnt lgkmcnt(0)')
            for i in range(16):
                a('v_mul_f32 v%d, v24, v%d' % (64 + i, 64 + i))
            for i in range(16):
                a('v_fma_f32 v%d, v%d, v%d, v%d' % (32 + i, 32 + i, 80 + i, 64 + i))
            for i in range(8):
                a('v_cvt_pk_bf16_f32 v%d, v%d, v%d' % (96 + i, 32 + 2 * i, 33 + 2 * i))
            for i in range(8):
                a('v_cndmask_b32 v%d, v3, v%d, vcc' % (96 + i, 96 + i))
            a('buffer_store_dwordx4 v[96:99], v8, %s, s5 offen offset:1536 sc1' % WSR)
            a('buffer_store_dwordx4 v[100:103], v8, %s, s5 offen offset:2560 sc1' % WSR)
        if kind == 0:
            a('s_branch L_kvpub')
    a('L_kvpub:')
    a('s_waitcnt vmcnt(0)')
    nonce_get(a, 13, True)
    a('s_barrier')
    stamp(a, 11)
    a('s_mov_b32 s44, s18')
    a('s_mov_b32 s45, s19')
    a('s_mov_b32 s46, %d' % (640 * 1280))
    nxt = 'L_idle' if OPT.get('noA') else 'L_roleA2'
    a('s_cmp_lg_u32 s3, 0')
    a('s_cbranch_scc1 %s' % nxt)
    a('s_lshl_b32 s4, s76, 7')
    a('s_add_u32 s4, s4, 0x%x' % KFLAG)
    publish(a, 's4')
    a('s_branch %s' % nxt)


def role_a(a):
    SL = 20480
    a('L_roleA:')
    prio(a, 2)
    ntouch0 = 0
    if not OPT.get('not0'):
        a('s_lshr_b32 s5, s2, 3')
        a('s_min_u32 s5, s5, 27')
        a('s_lshl_b32 s5, s5, 2')
        a('s_add_u32 s5, s5, s3')
        a('v_lshlrev_b32 v2, 7, v0')
        a('s_and_b32 s4, s2, 7')
        a('s_mul_i32 s4, s4, %d' % (256 * 1280))
        a('s_mul_i32 s6, s5, %d' % (23 * 128))
        a('s_add_u32 s4, s4, s6')
        a('s_mov_b64 exec, 0x7fffff')
        a('buffer_load_dword v31, v2, %s, s4 offen' % X)
        a('s_bitcmp1_b32 s5, 0')
        a('s_cselect_b32 s8, s20, s22')
        a('s_cselect_b32 s9, s21, s23')
        a('s_mov_b32 s10, 25600')
        a('s_mov_b32 s11, 0x00020000')
        a('s_lshr_b32 s6, s5, 1')
        a('s_lshl_b32 s6, s6, 9')
        a('s_mov_b64 exec, 0xf')
        a('buffer_load_dword v31, v2, s[8:11], s6 offen')
        a('s_mul_i32 s6, s5, %d' % (58 * 128))
        a('s_mov_b32 exec_lo, -1')
        a('s_mov_b32 exec_hi, 0x3ffffff')
        a('buffer_load_dword v31, v2, %s, s6 offen' % W)
        a('s_mov_b64 exec, -1')
    a('L_roleA2:')
    prio(a, 2)
    a('s_and_b32 s4, s2, 7')
    a('s_lshr_b32 s5, s2, 3')
    a('s_and_b32 s79, s5, 7')
    a('s_lshr_b32 s5, s5, 3')
    a('s_lshl_b32 s4, s4, 2')
    a('s_add_u32 s76, s4, s5')
    a('s_lshl_b32 s77, s76, 6')
    a('s_lshl_b32 s4, s3, 4')
    a('s_add_u32 s4, s4, s77')
    x_voff(a, 10, 11, 's4', 2, 3)
    a('v_add_u32 v11, 10240, v11')
    a('s_mul_i32 s4, s3, %d' % (16 * 1280))
    a('s_mul_i32 s5, s79, 160')
    a('s_add_u32 s4, s4, s5')
    a('s_lshl_b32 s80, s3, 11')
    a('s_mul_i32 s81, s3, 3072')
    a('s_add_u32 s81, s81, 8192')
    vm = VM()

    a('s_and_b32 s6, s76, 3')
    a('s_mul_i32 s6, s6, 5')
    a('s_lshr_b32 s6, s6, 1')
    a('s_mul_i32 s7, s79, %d' % OPT.get('rota', 3))
    a('s_add_u32 s6, s6, s7')
    a('s_mul_i32 s7, s6, 6554')
    a('s_lshr_b32 s7, s7, 16')
    a('s_mul_i32 s7, s7, 10')
    a('s_sub_u32 s6, s6, s7')
    if OPT.get('norot'):
        a('s_mov_b32 s6, 0')
    rot_init(a, 's88', 's6', 10, 128)
    rot_init(a, 's89', 's6', 10, 81920)

    def dmax(jb):
        sl = (jb & 3) * SL
        o = [['s_add_u32 m0, s80, %d' % (sl + n * 1024), 's_nop 0',
              'buffer_load_dwordx4 v%d, %s, s88 offen lds' % (10 + n, X), jb] for n in range(2)]
        o[1][3:3] = rot_step('s88', 10, 128)
        return o

    def dmaw(jb):
        sl = (jb & 3) * SL
        o = [['s_add_u32 m0, s81, %d' % (sl + n * 1024), 's_nop 0',
              'buffer_load_dwordx4 v%d, %s, s89 offen lds' % (12 + n, W), jb] for n in range(3)]
        o[2][3:3] = rot_step('s89', 10, 81920)
        return o

    for d in dmax(0):
        emit(a, vm, d)
    for n in range(3):
        a('v_add_u32 v2, %d, v0' % (64 * n))
        divc(a, 2, 3, 4)
        a('v_min_u32 v4, 9, v4')
        a('v_mul_u32_u24 v3, 1280, v3')
        a('v_lshl_add_u32 v3, v4, 4, v3')
        a('v_add_u32 v%d, s4, v3' % (12 + n))
    for d in dmaw(0) + sum([dmax(jb) + dmaw(jb) for jb in range(1, 4)], []):
        emit(a, vm, d)
    if OPT.get('st2'):
        stamp(a, 7)
    x_raddr(a, 16, '0', 2, 3)
    for s in range(4):
        a('v_add_u32 v%d, %d, v%d' % (20 + s, 2 * SL, 16 + s))
    tr_lane(a, 2, 3, 8)
    a('v_mul_u32_u24 v2, 192, v2')
    a('v_add_u32 v2, v2, v3')
    a('v_bfe_u32 v3, v0, 4, 1')
    a('v_lshl_add_u32 v2, v3, 5, v2')
    a('s_mul_i32 s4, s3, 40')
    a('s_add_u32 s4, s4, 8192')
    a('v_add_u32 v24, s4, v2')
    a('v_add_u32 v25, %d, v24' % (2 * SL))
    sel_ones(a, 4, 2, 3)
    for r in list(range(32, 64)) + [26, 27, 28, 29]:
        a('v_mov_b32 v%d, 0' % r)

    for jb in range(11):
        if jb < 10:
            a('s_waitcnt vmcnt(%d) lgkmcnt(0)' % vm.cnt(jb))
        else:
            a('s_waitcnt lgkmcnt(0)')
        a('s_barrier')
        if jb in (0, 4):
            stamp(a, 1 if jb == 0 else 2)
        if OPT.get('st2') and jb in (2, 7):
            stamp(a, 8 if jb == 2 else 9)
        rd = []
        pend = []
        if jb < 10:
            sl = (jb & 1) * SL
            hi = (jb & 2) != 0
            b = 64 + 48 * (jb & 1)
            for s in range(4):
                for t in range(2):
                    rd.append('ds_read_b128 %s, v%d offset:%d' % (vr(b + 8 * s + 4 * t, 4), (20 if hi else 16) + s, sl + t * 4096))
                for u in range(2):
                    rd.append('ds_read_b64_tr_b16 %s, v%d offset:%d' % (vr(b + 32 + 4 * s + 2 * u, 2), 25 if hi else 24, sl + s * 3072 + u * 768))
            if 1 <= jb <= 6:
                pend = dmax(jb + 3) + dmaw(jb + 3)
            if jb == 7:
                pend = [[nonce_load(a, 30), 'n']]
        if jb == 0:
            for y in rd:
                a(y)
            continue
        b = 64 + 48 * ((jb - 1) & 1)
        k = 0
        for s in range(4):
            wf = b + 32 + 4 * s
            for t in range(2):
                mfma(a, 32 + 16 * t, wf, b + 8 * s + 4 * t)
                if pend:
                    emit(a, vm, pend.pop(0))
                for y in rd[2 * k:2 * k + 1]:
                    a(y)
                if t == 0:
                    rowsum(a, 26, wf, 4)
                for y in rd[2 * k + 1:2 * k + 2]:
                    a(y)
                k += 1
    PRIV = 57344
    FLAGL = 59392
    a('s_lshl_b32 s5, s3, 7')
    a('s_add_u32 s5, s5, %d' % PRIV)
    rowsum_store(a, 26, 's5', 2, 3)
    a('v_and_b32 v4, 31, v0')
    a('v_lshrrev_b32 v7, 5, v0')
    a('v_lshl_add_u32 v7, v7, 4, s5')
    a('v_mov_b32 v5, 0')
    a('v_mov_b32 v29, %d' % FLAGL)
    a('ds_write_b32 v29, v5')
    a('s_waitcnt lgkmcnt(0)')
    for q in range(3):
        a('ds_read_b128 %s, v7 offset:%d' % (vr(64 + 4 * q, 4), 32 * q))
    stamp(a, 3)
    a('s_cmp_lg_u32 s3, 0')
    a('s_cbranch_scc1 L_a_polled')
    a('s_waitcnt vmcnt(0)')
    nonce_get(a, 30, True)
    a('s_mov_b32 s98, 0x%x' % KFLAG)
    poll(a, 's98', '-1', optional=False)
    a('L_a_polled:')
    a('v_lshlrev_b32 v10, 4, v0')
    a('v_lshlrev_b32 v11, 3, v0')
    a('s_mul_i32 s80, s3, 7168')
    a('s_lshl_b32 s4, s76, 10')
    a('s_add_u32 s4, s4, 0x%x' % STATS)
    a('v_lshlrev_b32 v4, 4, v4')
    a('s_mov_b32 s82, s80')
    a('s_waitcnt lgkmcnt(0)')
    a('s_barrier')
    stamp(a, 4)

    def kvdma_groups(slot, soff_reg):
        g = []
        for i in range(7):
            x = ['s_add_u32 m0, s80, %d' % (slot * 28672 + (i >> 2) * 4096)]
            x += ['buffer_load_dwordx4 v10, %s, %s offen offset:%d sc1 lds' % (KVR, soff_reg, (i & 3) * 1024)]
            if i == 3:
                x += ['s_add_u32 %s, %s, 4096' % (soff_reg, soff_reg)]
            if i == 6:
                x += ['s_add_u32 %s, %s, %d' % (soff_reg, soff_reg, 28672 - 4096)]
            g.append(x)
        return g

    def kvdma_list(slot, soff_reg):
        return sum(kvdma_groups(slot, soff_reg), [])

    def kv_start():
        for x in kvdma_list(0, 's82') + kvdma_groups(1, 's82')[0]:
            a(x)

    a('buffer_load_dwordx2 v[80:81], v4, %s, s4 offen sc1' % WSR)
    a('buffer_load_dwordx2 v[82:83], v4, %s, s4 offen offset:512 sc1' % WSR)
    kv_start()
    ntouch = 0
    if not OPT.get('nokvtouch'):
        ntouch = 1
        a('s_lshr_b32 s5, s2, 3')
        a('s_lshl_b32 s5, s5, 2')
        a('s_add_u32 s5, s5, s3')
        a('s_mul_i32 s5, s5, %d' % (14 * 128))
        a('v_lshlrev_b32 v2, 7, v0')
        a('s_mov_b64 exec, 0x3fff')
        a('buffer_load_dword v31, v2, %s, s5 offen sc1' % KVR)
        a('s_mov_b64 exec, -1')
    a('s_mov_b32 s4, 0x%x' % f2u(QS))
    a('s_waitcnt vmcnt(%d)' % (8 + ntouch))
    Q1 = [160, 166]
    Q2 = [164, 170]
    a('v_cmp_gt_u32 s[84:85], 32, v0')
    for t in range(2):
        a('v_mul_f32 v%d, s4, v%d' % (81 + 2 * t, 81 + 2 * t))
        for i in range(12):
            a('v_fma_f32 v%d, v%d, v%d, v%d' % (32 + 16 * t + i, 80 + 2 * t, 64 + i, 32 + 16 * t + i))
        for i in range(12):
            a('v_mul_f32 v%d, v%d, v%d' % (32 + 16 * t + i, 81 + 2 * t, 32 + 16 * t + i))
        for i in range(6):
            a('v_cvt_pk_bf16_f32 v%d, v%d, v%d' % (Q1[t] + i, 32 + 16 * t + 2 * i, 33 + 16 * t + 2 * i))
        for i in range(2):
            a('v_cndmask_b32 v%d, 0, v%d, s[84:85]' % (Q2[t] + i, Q2[t] + i))
    O = [32, 48]
    S = [64, 80]
    P = [96, 104]
    K1 = [112, 116]
    K2 = [120, 122]
    V = [124, 132]
    M = [12, 13]

    def rdK(buf, off):
        return ['ds_read_b128 %s, v10 offset:%d' % (vr(K1[buf], 4), off),
                'ds_read_b64 %s, v11 offset:%d' % (vr(K2[buf], 2), off + 1024)]

    def rdV(buf, off):
        return ['ds_read_b128 %s, v10 offset:%d' % (vr(V[buf], 4), off + 1536),
                'ds_read_b128 %s, v10 offset:%d' % (vr(V[buf] + 4, 4), off + 2560)]

    def smf(dst, kb, q):
        return ['%s %s, %s, %s, 0' % (MF16, vr(dst, 16), vr(K1[kb], 4), vr(Q1[q], 4)),
                '%s %s, %s, %s, %s' % (MF8, vr(dst, 16), vr(K2[kb], 2), vr(Q2[q], 2), vr(dst, 16))]

    def pvf(q, vb):
        return ['%s %s, %s, %s, %s' % (MF16, vr(O[q], 16), vr(V[vb] + 4 * i, 4), vr(P[q] + 4 * i, 4), vr(O[q], 16)) for i in range(2)]

    def maxtree(m, s, first):
        if first:
            a('v_max3_f32 v%d, v%d, v%d, v%d' % (m, s, s + 1, s + 2))
            a('v_max_f32 v%d, v%d, v%d' % (m, m, s + 3))
            k = 4
        else:
            k = 0
        while k < 16:
            a('v_max3_f32 v%d, v%d, v%d, v%d' % (m, m, s + k, s + k + 1))
            k += 2

    a('s_mov_b32 s83, 0')
    a('s_waitcnt vmcnt(%d)' % (1 + ntouch))
    a('s_barrier')
    stamp(a, 5)
    a('s_cmp_lt_u32 s2, 216')
    a('s_cbranch_scc1 L_a_nosig')
    a('s_cmp_lg_u32 s3, 0')
    a('s_cbranch_scc1 L_a_nosig')
    a('s_lshl_b32 s4, s2, 7')
    a('s_add_u32 s4, s4, 0x%x' % (AFLAG - 216 * 128))
    publish(a, 's4')
    a('L_a_nosig:')
    for x in rdK(0, 0) + rdK(1, 3584):
        a(x)
    for r in list(range(P[1], P[1] + 8)) + list(range(V[1], V[1] + 8)):
        a('v_mov_b32 v%d, 0' % r)
    a('s_waitcnt lgkmcnt(0)')
    for kb, q, d in ((0, 0, S[0]), (0, 1, S[1]), (1, 0, O[0]), (1, 1, O[1])):
        for x in smf(d, kb, q):
            a(x)
    maxtree(M[0], S[0], True)
    maxtree(M[1], S[1], True)
    maxtree(M[0], O[0], False)
    maxtree(M[1], O[1], False)
    a('v_add_f32 v%d, 0x%x, v%d' % (M[0], f2u(OFFSET), M[0]))
    a('v_add_f32 v%d, 0x%x, v%d' % (M[1], f2u(OFFSET), M[1]))
    a('L_a_restart:')
    for x in rdK(0, 0) + rdV(0, 0):
        a(x)
    a('s_mov_b32 s4, 0xffff0000')
    for q in range(2):
        m = M[q]
        a('v_mov_b32 v2, v%d' % m)
        a('v_permlane32_swap_b32 v%d, v2' % m)
        a('v_max_f32 v%d, v%d, v2' % (m, m))
        a('v_sub_f32 v2, 0, v%d' % m)
        a('v_and_b32 v3, s4, v2')
        a('v_sub_f32 v2, v2, v3')
        a('v_and_b32 v4, s4, v2')
        a('v_sub_f32 v2, v2, v4')
        a('v_lshrrev_b32 v3, 16, v3')
        a('v_or_b32 v3, v3, v4')
        a('v_lshrrev_b32 v2, 16, v2')
        a('v_cndmask_b32 v%d, v3, v%d, s[84:85]' % (Q2[q], Q2[q]))
        a('v_cndmask_b32 v%d, v2, v%d, s[84:85]' % (Q2[q] + 1, Q2[q] + 1))
        if q == 0:
            a('s_waitcnt lgkmcnt(0)')
            a('s_nop 0')
            for x in smf(S[0], 0, 0):
                a(x)
    for r in range(32, 64):
        a('v_mov_b32 v%d, 0' % r)
    stamp(a, 6)
    if STAMPS[0]:
        a('s_memtime s[100:101]')
        a('s_waitcnt lgkmcnt(0)')
        a('v_writelane_b32 v15, s100, 12')
    a('s_mov_b32 s86, 4')
    if 'aprio' in OPT:
        prio(a, OPT['aprio'])
    if OPT.get('barst'):
        a('s_mov_b32 s94, 0')
        a('s_mov_b32 s95, 0')
    a('.p2align 6')
    a('L_a_loop:')
    pat = OPT.get('pat', 'eeMLLeeceeceMeceeceMXeceeceeMwDcc')
    order = [int(ch) for ch in str(OPT.get('order', 'o0123'))[1:]]
    assert pat.count('e') == 16 and pat.count('c') == 8 and pat.count('M') == 4
    sched = {}
    step = OPT.get('dstep', 3)
    for base, sl in ((15, 0), (31, 1)):
        for i, g in enumerate(kvdma_groups(sl, 's82')):
            sched[(base + (i * step) // 2) % 32] = g
    for j in range(16):
        off1 = (((j + 1) >> 3) & 1) * 28672 + ((j + 1) & 7) * 3584
        for q in range(2):
            extra = list(sched.get(2 * j + q, [])) if not OPT.get('nokvdma') else []
            if extra and OPT.get('abump'):
                extra = extra[:1] + ['s_setprio 3'] + extra[1:] + ['s_setprio %d' % OPT.get('aprio', 2)]
            if q == 0:
                if (j & 7) == 7:
                    if OPT.get('barst'):
                        a('s_waitcnt lgkmcnt(0)')
                        a('s_memtime s[88:89]')
                        a('s_waitcnt vmcnt(0) lgkmcnt(0)')
                        a('s_memtime s[90:91]')
                        a('s_waitcnt lgkmcnt(0)')
                        a('s_barrier')
                        a('s_memtime s[92:93]')
                        a('s_sub_u32 s88, s90, s88')
                        a('s_add_u32 s94, s94, s88')
                        a('s_waitcnt lgkmcnt(0)')
                        a('s_sub_u32 s88, s92, s90')
                        a('s_add_u32 s95, s95, s88')
                    else:
                        a('s_waitcnt vmcnt(0) lgkmcnt(0)')
                        a('s_barrier')
                rd = rdK((j + 1) & 1, off1)
                ms = smf(S[1], j & 1, 1) + pvf(1, (j - 1) & 1)
            else:
                rd = rdV((j + 1) & 1, off1)
                ms = smf(S[0], (j + 1) & 1, 0) + pvf(0, j & 1)
            ms = [ms[i] for i in order]
            e = c = 0
            for x in pat:
                if x == 'M':
                    a(ms.pop(0))
                elif x == 'e':
                    a('v_exp_f32 v%d, v%d' % (S[q] + e, S[q] + e))
                    e += 1
                elif x == 'c':
                    assert 2 * c + 1 < e
                    a('v_cvt_pk_bf16_f32 v%d, v%d, v%d' % (P[q] + c, S[q] + 2 * c, S[q] + 2 * c + 1))
                    c += 1
                elif x == 'L':
                    a(rd.pop(0))
                elif x == 'w':
                    if q == 0:
                        a('s_waitcnt lgkmcnt(0)')
                elif x == 'N':
                    a('s_nop 0')
                elif x == 'X':
                    if extra:
                        a(extra.pop(0))
                elif x == 'D':
                    for y in extra:
                        a(y)
                    extra = []
            assert not rd and not extra
    if STAMPS[0] and OPT.get('loopstamps'):
        a('s_memrealtime s[100:101]')
        a('s_sub_u32 m0, 11, s86')
        a('s_waitcnt lgkmcnt(0)')
        a('v_writelane_b32 v15, s100, m0')
    a('s_sub_u32 s86, s86, 1')
    a('s_cmp_lg_u32 s86, 0')
    a('s_cbranch_scc1 L_a_loop')
    for x in pvf(1, 1):
        a(x)
    if STAMPS[0]:
        a('s_memtime s[100:101]')
        a('s_waitcnt lgkmcnt(0)')
        a('v_readlane_b32 s4, v15, 12')
        a('s_sub_u32 s4, s100, s4')
        a('v_writelane_b32 v15, s4, 12')
    stamp(a, 10)
    if OPT.get('barst'):
        a('v_writelane_b32 v15, s94, 7')
        a('v_writelane_b32 v15, s95, 8')
    a('s_lshl_b32 s4, s76, 1')
    a('s_mul_i32 s4, s4, 40960')
    a('s_mul_i32 s5, s79, 5120')
    a('s_add_u32 s4, s4, s5')
    a('s_add_u32 s4, s4, 0x%x' % OF)
    a('s_mov_b32 s9, s4')
    a('s_lshl_b32 s5, s3, 10')
    a('s_add_u32 s5, s5, s4')
    a('s_and_b32 s6, s3, 1')
    a('s_lshl_b32 s6, s6, 9')
    a('s_lshr_b32 s7, s3, 1')
    a('s_lshl_b32 s7, s7, 3')
    a('s_add_u32 s6, s6, s7')
    a('s_add_u32 s6, s6, s4')
    a('s_add_u32 s6, s6, 4096')
    a('s_mov_b32 s8, 0x7f000000')
    for q in range(2):
        o = O[q]
        a('v_mov_b32 v2, v%d' % (o + 8))
        a('v_mov_b32 v3, v%d' % (o + 8))
        a('v_add_f32 v5, abs(v%d), abs(v%d)' % (o, o + 1))
        a('v_permlane32_swap_b32 v2, v3')
        a('v_rcp_f32 v3, v3')
        for i in range(2, 12):
            a('v_add_f32 v5, v5, abs(v%d)' % (o + i))
        a('v_cmp_gt_f32 s[%d:%d], s8, v5' % (10 + 2 * q, 11 + 2 * q))
        a('v_mov_b32 v2, v3')
        for i in range(0, 12, 2):
            a('v_pk_mul_f32 %s, %s, v[2:3]' % (vr(o + i, 2), vr(o + i, 2)))
        for i in range(6):
            a('v_cvt_pk_bf16_f32 v%d, v%d, v%d' % (64 + 8 * q + i, o + 2 * i, o + 2 * i + 1))
        a('buffer_store_dwordx4 %s, v10, %s, s5 offen sc1' % (vr(64 + 8 * q, 4), WSR))
        a('s_mov_b64 exec, s[84:85]')
        a('buffer_store_dwordx2 %s, v10, %s, s6 offen sc1' % (vr(68 + 8 * q, 2), WSR))
        a('s_mov_b64 exec, -1')
        if q == 0:
            a('s_add_u32 s5, s5, 40960')
            a('s_add_u32 s6, s6, 40960')
    a('s_and_b64 s[10:11], s[10:11], s[12:13]')
    a('s_cmp_eq_u64 s[10:11], -1')
    a('s_cbranch_scc1 L_a_ok')
    a('v_mov_b32 v2, 1')
    a('ds_write_b32 v29, v2')
    a('L_a_ok:')
    a('s_lshl_b32 s4, s76, 10')
    a('s_lshl_b32 s5, s79, 7')
    a('s_add_u32 s4, s4, s5')
    a('s_add_u32 s98, s4, 0x%x' % OFLAG)
    a('s_waitcnt vmcnt(0) lgkmcnt(0)')
    a('s_barrier')
    a('ds_read_b32 v2, v29')
    a('s_waitcnt lgkmcnt(0)')
    a('v_readfirstlane_b32 s4, v2')
    a('s_cmp_gt_u32 s4, s83')
    if not OPT.get('nokvdma'):
        a('s_cbranch_scc1 L_a_fallback')
    a('s_cmp_lg_u32 s3, 0')
    a('s_cbranch_scc1 L_a_touch')
    publish(a, 's98')
    a('s_branch L_fin')
    a('L_a_touch:')
    if not OPT.get('nootouch'):
        a('s_cmp_eq_u32 s3, 3')
        a('s_cbranch_scc1 L_fin')
        a('s_sub_u32 s5, s3, 1')
        a('s_mul_i32 s5, s5, 40960')
        a('s_add_u32 s5, s5, s9')
        a('v_lshlrev_b32 v2, 7, v0')
        a('s_mov_b32 exec_hi, 0xff')
        a('buffer_load_dword v3, v2, %s, s5 offen sc1' % WSR)
    a('s_branch L_fin')
    a('L_a_fallback:')
    a('s_mov_b32 s83, 1')
    for q in range(2):
        a('v_mov_b32 v%d, 0xff800000' % M[q])
        for i in range(2):
            a('v_cndmask_b32 v%d, 0, v%d, s[84:85]' % (Q2[q] + i, Q2[q] + i))
    for r in list(range(P[1], P[1] + 8)) + list(range(V[1], V[1] + 8)):
        a('v_mov_b32 v%d, 0' % r)
    a('s_mov_b32 s82, s80')
    a('s_mov_b32 s86, 64')
    a('s_mov_b32 s87, 0')
    a('L_a_fb_loop:')
    a('buffer_load_dwordx4 %s, v10, %s, s87 offen sc1' % (vr(K1[0], 4), KVR))
    a('buffer_load_dwordx2 %s, v11, %s, s87 offen offset:1024 sc1' % (vr(K2[0], 2), KVR))
    a('s_waitcnt vmcnt(0)')
    for q in range(2):
        for x in smf(S[q], 0, q):
            a(x)
    for q in range(2):
        maxtree(M[q], S[q], False)
    a('s_add_u32 s87, s87, 3584')
    a('s_sub_u32 s86, s86, 1')
    a('s_cmp_lg_u32 s86, 0')
    a('s_cbranch_scc1 L_a_fb_loop')
    kv_start()
    a('s_waitcnt vmcnt(1)')
    a('s_barrier')
    a('s_branch L_a_restart')


def role_g1(a):
    XB = 32768
    ACC, WF, XF, CSA = 128, 64, 32, 8
    a('L_roleG1:')
    a('s_and_b32 s4, s2, 7')
    a('s_lshr_b32 s5, s2, 3')
    a('s_and_b32 s6, s4, 3')
    a('s_mul_i32 s6, s6, 27')
    a('s_add_u32 s6, s6, s5')
    a('s_lshr_b32 s79, s6, 2')
    a('s_and_b32 s6, s6, 3')
    a('s_and_b32 s4, s4, 4')
    a('s_add_u32 s76, s4, s6')
    if OPT.get('same'):
        a('s_mov_b32 s76, 0')
        a('s_mov_b32 s79, 0')
    a('s_lshr_b32 s78, s3, 1')
    a('s_cmp_eq_u32 s78, 0')
    a('s_cselect_b32 s44, s28, s30')
    a('s_cselect_b32 s45, s29, s31')
    a('s_mov_b32 s46, %d' % (640 * 3456))
    a('s_lshl_b32 s4, s76, 8')
    a('s_lshl_b32 s5, s3, 6')
    a('s_add_u32 s77, s4, s5')
    x_voff(a, 24, 25, 's77', 2, 3)
    a('v_lshrrev_b32 v2, 3, v0')
    a('v_mul_u32_u24 v2, 3456, v2')
    a('v_bfe_u32 v3, v0, 4, 1')
    a('s_lshl_b32 s4, s78, 1')
    a('v_or_b32 v3, s4, v3')
    a('v_lshlrev_b32 v3, 1, v3')
    a('v_and_b32 v4, 7, v0')
    a('v_xor_b32 v3, v3, v4')
    a('v_lshl_add_u32 v2, v3, 4, v2')
    a('s_and_b32 s4, s3, 1')
    a('s_mul_i32 s5, s4, %d' % (32 * 3456))
    a('s_lshl_b32 s6, s79, 7')
    a('s_add_u32 s5, s5, s6')
    a('v_add_u32 v26, s5, v2')
    a('s_lshl_b32 s81, s78, 13')
    a('s_lshl_b32 s4, s4, 12')
    a('s_add_u32 s81, s81, s4')
    a('s_mul_i32 s80, s3, 12288')
    a('s_add_u32 s80, s80, %d' % XB)
    a('s_and_b32 s6, s76, 3')
    a('s_mul_i32 s6, s6, 5')
    a('s_lshr_b32 s6, s6, 1')
    a('s_mul_i32 s7, s79, 3')
    a('s_add_u32 s6, s6, s7')
    a('s_mul_i32 s7, s6, 6554')
    a('s_lshr_b32 s7, s7, 16')
    a('s_mul_i32 s7, s7, 10')
    a('s_sub_u32 s6, s6, s7')
    if OPT.get('norot'):
        a('s_mov_b32 s6, 0')
    rot_init(a, 's88', 's6', 10, 128)
    rot_init(a, 's89', 's6', 10, 64 * 3456)
    vm = VM()

    def dmax(n):
        if n > 19:
            return []
        j, t = n >> 1, n & 1
        o = [['s_add_u32 m0, s80, %d' % ((n % 3) * 4096 + m * 1024), 's_add_u32 s4, s88, %d' % ((32 * t + 8 * m) * 1280),
              'buffer_load_dwordx4 v%d, %s, s4 offen lds' % (24 + (m & 1), X), ('x', n)] for m in range(4)]
        if t == 1:
            o[3][3:3] = rot_step('s88', 10, 128)
        return o

    def dmaw(j):
        if j > 9:
            return []
        o = [['s_add_u32 m0, s81, %d' % ((j & 1) * 16384 + n * 1024), 's_add_u32 s4, s89, %d' % (8 * n * 3456),
              'buffer_load_dwordx4 v26, %s, s4 offen lds' % W, ('w', j)] for n in range(4)]
        o[3][3:3] = rot_step('s89', 10, 64 * 3456)
        return o

    if OPT.get('t1'):
        a('s_and_b32 s6, s76, 3')
        a('s_lshl_b32 s6, s6, 1')
        a('s_and_b32 s7, s3, 1')
        a('s_add_u32 s6, s6, s7')
        a('s_mul_i32 s6, s6, 3456')
        a('s_lshl_b32 s7, s79, 7')
        a('s_add_u32 s6, s6, s7')
        a('v_mul_u32_u24 v2, %d, v0' % (8 * 3456))
        a('s_mul_i32 s7, s79, 9363')
        a('s_lshr_b32 s7, s7, 16')
        a('s_mul_i32 s7, s7, 7')
        a('s_sub_u32 s7, s79, s7')
        a('s_mul_i32 s8, s3, 7')
        a('s_add_u32 s7, s7, s8')
        a('v_mul_u32_u24 v3, 28, v0')
        a('v_add_u32 v3, s7, v3')
        a('s_mul_i32 s8, s76, %d' % (256 * 1280))
        for i in range(2):
            if i:
                a('v_add_u32 v3, %d, v3' % (28 * 64))
            a('v_and_b32 v4, 255, v3')
            a('v_mul_u32_u24 v4, 1280, v4')
            a('v_lshrrev_b32 v5, 8, v3')
            a('v_lshl_add_u32 v%d, v5, 7, v4' % (12 + i))
        emit(a, vm, ['buffer_load_dword v31, v2, %s, s6 offen' % W, 'pf'])
        emit(a, vm, ['buffer_load_dword v31, v12, %s, s8 offen' % X, 'pf'])
        a('s_add_u32 s6, s6, %d' % (512 * 3456))
        a('s_mov_b64 exec, 0xffff')
        emit(a, vm, ['buffer_load_dword v31, v2, %s, s6 offen' % W, 'pf'])
        a('s_mov_b64 exec, 0xfffffff')
        emit(a, vm, ['buffer_load_dword v31, v13, %s, s8 offen' % X, 'pf'])
        a('s_mov_b64 exec, -1')
    x_raddr(a, 20, 's80', 2, 3)
    tr_lane(a, 2, 3, 8)
    a('v_lshlrev_b32 v2, 7, v2')
    a('v_add_u32 v2, v2, v3')
    a('v_bfe_u32 v3, v0, 4, 1')
    a('v_lshl_add_u32 v2, v3, 13, v2')
    a('v_lshlrev_b32 v3, 1, v3')
    a('v_bfe_u32 v4, v0, 3, 1')
    a('v_or_b32 v3, v3, v4')
    a('v_xor_b32 v3, s3, v3')
    for c in range(4):
        a('v_xor_b32 v4, %d, v3' % c)
        a('v_lshl_add_u32 v%d, v4, 5, v2' % (16 + c))
    sel_ones(a, 4, 2, 3)
    for d in dmax(0) + dmaw(0) + dmax(1):
        emit(a, vm, d)

    def rdw(j, s, c):
        return ['ds_read_b64_tr_b16 %s, v%d offset:%d' % (vr(WF + 16 * s + 4 * c + 2 * u, 2), 16 + c, (j & 1) * 16384 + s * 2048 + u * 512) for u in range(2)]

    def rdx(n):
        return ['ds_read_b128 %s, v%d offset:%d' % (vr(XF + 16 * (n & 1) + 4 * s, 4), 20 + s, (n % 3) * 4096) for s in range(4)]

    G1P = OPT.get('g1prio', 0)
    a('s_waitcnt vmcnt(%d)' % vm.cnt(('w', 0)))
    a('s_barrier')
    stamp(a, 1)
    if G1P:
        prio(a, G1P)
    for y in rdx(0):
        a(y)
    for s in range(4):
        for c in range(4):
            for y in rdw(0, s, c):
                a(y)
    for n in range(20):
        j, t = n >> 1, n & 1
        if n == OPT.get('g1lo', -1):
            G1P = 0
            prio(a, 0)
        xr = rdx(n + 1) if n < 19 else []
        if t == 0:
            if n < 19:
                a('s_waitcnt vmcnt(%d) lgkmcnt(12)' % vm.cnt(('x', n + 1)))
            dm = dict(zip((1, 4, 7, 10), dmax(n + 3)))
            dm.update(zip((12, 14), dmax(n + 4)[:2]))
            if n == 0:
                dm = dict(enumerate(dmaw(1) + dmax(2) + dmax(3)))
                dm.update(zip((12, 14), dmax(4)[:2]))
        else:
            if n < 19:
                cw = vm.cnt(('w', j + 1))
                if vm.has(('x', n + 1)):
                    cw = vm.cnt(('x', n + 1))
                a('s_waitcnt vmcnt(%d)' % cw)
                a('s_barrier')
            if n == 9:
                stamp(a, 2, low=G1P)
            dm = dict(zip((1, 3, 6, 9), dmaw(j + 2)))
            dm.update(zip((11, 14), dmax(n + 3)[2:]))
            if n == 17:
                dm[5] = [nonce_load(a, 30), 'n']
        if OPT.get('g1nodma'):
            dm = {}
            for tg in [('x', n + 3), ('x', n + 4), ('w', j + 2)]:
                vm.issue(tg)
        k = 0
        for s in range(4):
            for c in range(4):
                if t == 0 and k == 8:
                    a('s_waitcnt lgkmcnt(4)')
                mfma(a, ACC + 64 * t + 16 * c, WF + 16 * s + 4 * c, XF + 16 * t + 4 * s, c='0' if (j, s) == (0, 0) else None)
                if t == 0 and k == 11:
                    a('s_waitcnt lgkmcnt(0)')
                if k in dm:
                    emit(a, vm, dm[k])
                if k < 4 and xr:
                    a(xr[k])
                if t == 1 and j < 9 and not OPT.get('g1nords'):
                    for y in rdw(j + 1, s, c):
                        a(y)
                if t == 0 and c == 1 and not OPT.get('g1nocs'):
                    rowsum(a, CSA, WF + 16 * s, 4, first=(j, s) == (0, 0))
                k += 1
    prio(a, 3)
    stamp(a, 3)
    CS = 0
    a('s_lshl_b32 s4, s3, 7')
    a('s_add_u32 s4, s4, %d' % CS)
    rowsum_store(a, CSA, 's4', 2, 3)
    a('v_and_b32 v4, 31, v0')
    a('s_lshl_b32 s4, s76, 2')
    a('s_add_u32 s4, s4, s3')
    a('s_waitcnt vmcnt(0)')
    nonce_get(a, 30, True)
    a('s_lshl_b32 s98, s4, 7')
    a('s_add_u32 s98, s98, 0x%x' % KFLAG)
    poll(a, 's98', '1', optional=False)
    a('s_lshl_b32 s4, s4, 10')
    a('s_add_u32 s4, s4, 0x%x' % STATS)
    a('v_lshlrev_b32 v4, 4, v4')
    a('buffer_load_dwordx4 v[32:35], v4, %s, s4 offen sc1' % WSR)
    a('buffer_load_dwordx4 v[36:39], v4, %s, s4 offen offset:512 sc1' % WSR)
    a('s_waitcnt lgkmcnt(0)')
    a('s_barrier')
    a('v_lshrrev_b32 v7, 5, v0')
    a('v_lshlrev_b32 v7, 4, v7')
    for c in range(4):
        a('s_xor_b32 s%d, s3, %d' % (8 + c, c))
        a('s_lshl_b32 s5, s%d, 7' % (8 + c))
        a('s_add_u32 s5, s5, %d' % CS)
        a('v_add_u32 v6, s5, v7')
        for q in range(4):
            a('ds_read_b128 %s, v6 offset:%d' % (vr(64 + 16 * c + 4 * q, 4), 32 * q))
    a('s_lshr_b32 s5, s77, 5')
    a('s_mul_i32 s5, s5, 108')
    a('s_lshl_b32 s6, s79, 2')
    a('s_add_u32 s5, s5, s6')
    for c in range(4):
        a('s_add_u32 s%d, s%d, s5' % (8 + c, 8 + c))
        a('s_lshl_b32 s%d, s%d, 10' % (8 + c, 8 + c))
        a('s_add_u32 s%d, s%d, 0x%x' % (8 + c, 8 + c, HF))
    a('v_lshlrev_b32 v8, 4, v0')
    a('s_waitcnt vmcnt(0) lgkmcnt(0)')
    stamp(a, 4)
    for t in range(2):
        st = 32 + 4 * t
        a('v_mul_f32 v40, 0x%x, v%d' % (f2u(C1), st + 1))
        a('v_mul_f32 v42, v%d, v%d' % (st + 1, st + 1))
        a('v_mul_f32 v42, v42, v40')
        a('v_mul_f32 v42, 0x%x, v42' % f2u(0.044715))
        a('v_mov_b32 v44, v%d' % (st + 3))
        a('v_mov_b32 v45, v%d' % (st + 3))
        a('v_mov_b32 v41, v40')
        a('v_mov_b32 v43, v42')
        a('v_mov_b32 v46, v%d' % st)
        a('v_mov_b32 v47, v%d' % st)
        for c in range(4):
            ac = ACC + 64 * t + 16 * c
            cs = 64 + 16 * c
            T = 48
            for i in range(0, 16, 2):
                a('v_pk_fma_f32 %s, %s, v[46:47], %s' % (vr(ac + i, 2), vr(cs + i, 2), vr(ac + i, 2)))
            for i in range(0, 8, 2):
                a('v_pk_mul_f32 %s, %s, %s' % (vr(T + i, 2), vr(ac + i, 2), vr(ac + i, 2)))
            for i in range(0, 8, 2):
                a('v_pk_fma_f32 %s, %s, v[42:43], v[40:41]' % (vr(T + i, 2), vr(T + i, 2)))
            for i in range(0, 8, 2):
                a('v_pk_mul_f32 %s, %s, %s' % (vr(T + i, 2), vr(T + i, 2), vr(ac + i, 2)))
            for i in range(8):
                a('v_exp_f32 v%d, v%d' % (T + i, T + i))
            for i in range(0, 8, 2):
                a('v_pk_mul_f32 %s, %s, %s' % (vr(ac + i, 2), vr(ac + i, 2), vr(ac + 8 + i, 2)))
            for i in range(0, 8, 2):
                a('v_pk_fma_f32 %s, %s, v[44:45], v[44:45]' % (vr(T + i, 2), vr(T + i, 2)))
            for i in range(8):
                a('v_rcp_f32 v%d, v%d' % (T + i, T + i))
            for i in range(0, 8, 2):
                a('v_pk_mul_f32 %s, %s, %s' % (vr(ac + i, 2), vr(ac + i, 2), vr(T + i, 2)))
            for i in range(4):
                a('v_cvt_pk_bf16_f32 v%d, v%d, v%d' % (ac + 8 + i, ac + 2 * i, ac + 2 * i + 1))
            a('buffer_store_dwordx4 %s, v8, %s, s%d offen sc1' % (vr(ac + 8, 4), WSR, 8 + c))
            if t == 0:
                a('s_add_u32 s%d, s%d, %d' % (8 + c, 8 + c, 108 * 1024))
    stamp(a, 5)
    a('s_lshl_b32 s4, s76, 12')
    a('s_lshl_b32 s5, s79, 7')
    a('s_add_u32 s4, s4, s5')
    a('s_add_u32 s4, s4, 0x%x' % HFLAG)
    a('s_waitcnt vmcnt(0)')
    a('s_barrier')
    a('s_cmp_lg_u32 s3, 0')
    a('s_cbranch_scc1 L_roleG2')
    publish(a, 's4')


def role_g2(a):
    ACC, WP = 176, 48
    RG = [96 + 20 * d for d in range(4)]
    OB = [96 + 8 * d for d in range(10)]
    D = 4
    G2P = OPT.get('g2prio', 0)
    a('L_roleG2:')
    stamp(a, 6)
    if OPT.get('noG2'):
        a('s_branch L_fin')
    a('s_and_b32 s4, s2, 7')
    a('s_lshr_b32 s5, s2, 3')
    a('s_and_b32 s78, s5, 1')
    a('s_bfe_u32 s79, s5, 0x20001')
    a('s_lshr_b32 s5, s5, 3')
    a('s_lshl_b32 s4, s4, 2')
    a('s_add_u32 s76, s4, s5')
    a('s_mul_i32 s12, s3, 27')
    a('s_lshr_b32 s13, s12, 2')
    a('s_mul_i32 s4, s3, 10')
    a('s_add_u32 s4, s4, 108')
    a('s_lshr_b32 s4, s4, 2')
    a('s_sub_u32 s4, s4, 8')
    a('v_mov_b32 v2, s13')
    a('v_mov_b32 v3, s4')
    a('v_cmp_gt_u32 vcc, 8, v0')
    a('v_lshlrev_b32 v27, 4, v0')
    a('v_lshlrev_b32 v47, 7, v0')
    a('v_cndmask_b32 v2, v3, v2, vcc')
    a('v_lshl_add_u32 v4, v2, 7, v47')
    a('s_mov_b32 s98, 0x%x' % WFLAG)
    poll(a, 's98', '0x7ff', addr=4)
    a('s_mul_i32 s77, s79, 5')
    a('s_lshl_b32 s4, s78, 1')
    a('s_add_u32 s77, s77, s4')
    a('s_add_u32 s6, s77, s78')
    a('s_add_u32 s7, s6, 1')
    a('s_xor_b32 s8, s78, 1')
    a('s_lshl_b32 s8, s8, 1')
    a('s_add_u32 s8, s8, s77')
    a('s_lshl_b32 s5, s76, 1')
    a('s_add_u32 s84, s5, s78')
    a('s_xor_b32 s85, s84, 1')
    a('s_and_b32 s4, s76, 3')
    a('s_mul_i32 s4, s4, %d' % OPT.get('rot2', 7))
    rot_init(a, 's86', 's4', 27, 20480)
    rot_init(a, 's87', 's4', 27, 1024)
    a('s_mul_i32 s4, s12, 20480')
    a('s_add_u32 s4, s4, 0x%x' % WT)
    a('s_mul_i32 s5, s3, %d' % (10 * 20480))
    a('s_add_u32 s5, s5, 0x%x' % (WT + 108 * 20480))
    for c in range(3):
        a('s_lshl_b32 s9, s%d, 10' % (6 + c))
        a('s_add_u32 s%d, s9, s4' % (80 + c))
        a('s_add_u32 s%d, s9, s5' % (9 + c if c else 83))
    prio(a, G2P)
    vm = VM()

    def ldw(i):
        o = [['s_add_u32 s4, s%d, s86' % (80 + c), 'buffer_load_dwordx4 %s, v27, %s, s4 offen sc1' % (vr(RG[i % D] + 4 * c, 4), WSR), ('w', i)] for c in range(3)]
        o[2][2:2] = rot_step('s86', 27, 20480)
        return o

    def ldh(i):
        o = [['s_add_u32 s4, s%d, s87' % (94 + k), 'buffer_load_dwordx4 %s, v27, %s, s4 offen sc1' % (vr(RG[i % D] + 12 + 4 * k, 4), WSR), ('a', i)] for k in range(2)]
        o[1][2:2] = rot_step('s87', 27, 1024)
        return o

    def ldo(n):
        i, c = divmod(n, 3)
        sb = (83, 10, 11)[c]
        if i < 4:
            return ['s_add_u32 s4, s%d, %d' % (sb, i * 20480), 'buffer_load_dwordx4 %s, v27, %s, s4 offen sc1' % (vr(WP + 12 * i + 4 * c, 4), WSR), 'wo']
        return ['s_add_u32 m0, s93, %d' % ((n - 12) * 1024), 's_add_u32 s4, s%d, %d' % (sb, i * 20480),
                'buffer_load_dwordx4 v27, %s, s4 offen sc1 lds' % WSR, 'wo']

    for i in range(D - 1):
        for d in ldw(i):
            emit(a, vm, d)
    prio(a, 3)
    tiles = ((84, 6), (84, 7), (84, 8), (85, 6), (85, 7))
    for k, (T, c) in enumerate(tiles):
        a('s_mul_i32 s%d, s%d, %d' % (88 + k, T, 32 * 1280))
        a('s_lshl_b32 s4, s%d, 6' % c)
        a('s_add_u32 s%d, s%d, s4' % (88 + k, 88 + k))
    a('s_mul_i32 s93, s3, 20480')
    a('v_lshrrev_b32 v2, 3, v0')
    a('s_lshl_b32 s4, s3, 3')
    a('v_add_u32 v2, s4, v2')
    a('v_and_b32 v3, 7, v0')
    a('v_mul_u32_u24 v28, 1280, v2')
    a('v_lshl_add_u32 v28, v3, 3, v28')
    a('v_xor_b32 v3, v3, v2')
    a('v_and_b32 v3, 7, v3')
    a('v_lshlrev_b32 v29, 7, v2')
    a('v_lshl_add_u32 v29, v3, 4, v29')
    a('v_add_u32 v44, 61440, v29')
    a('v_add_u32 v16, s93, v27')
    a('v_and_b32 v2, 31, v0')
    a('v_lshrrev_b32 v3, 5, v0')
    a('v_xor_b32 v3, v3, v0')
    a('v_and_b32 v3, 7, v3')
    a('v_lshlrev_b32 v2, 7, v2')
    a('v_add_u32 v2, s93, v2')
    for q in range(4):
        a('v_xor_b32 v4, %d, v3' % (2 * q))
        a('v_lshl_add_u32 v%d, v4, 4, v2' % (40 + q))
    a('s_bfe_u32 s4, s2, 0x30003')
    a('s_mul_i32 s4, s4, 54')
    a('v_add_u32 v2, s4, v0')
    a('v_lshlrev_b32 v45, 7, v2')
    a('v_add_u32 v3, %d, v45' % (108 * 1024 - 216 * 128))
    a('v_cmp_lt_u32 vcc, 215, v2')
    a('s_mul_i32 s14, s76, %d' % (216 * 1024))
    a('s_lshl_b32 s4, s12, 10')
    a('v_cndmask_b32 v45, v45, v3, vcc')
    prio(a, G2P)
    a('s_add_u32 s14, s14, s4')
    a('s_add_u32 s14, s14, 0x%x' % HF)
    for k, T in enumerate((84, 85)):
        a('s_mul_i32 s%d, s%d, %d' % (94 + k, T, 108 * 1024))
        a('s_add_u32 s%d, s%d, s4' % (94 + k, 94 + k))
        a('s_add_u32 s%d, s%d, 0x%x' % (94 + k, 94 + k, HF))
        a('s_mul_i32 s%d, s%d, 40960' % (96 + k, T))
        a('s_mul_i32 s5, s3, 10240')
        a('s_add_u32 s%d, s%d, s5' % (96 + k, 96 + k))
        a('s_add_u32 s%d, s%d, 0x%x' % (96 + k, 96 + k, OF))
    for k in range(5):
        a('buffer_load_dwordx2 %s, v28, %s, s%d offen' % (vr(30 + 2 * k, 2), X, 88 + k))
    a('s_lshr_b32 s4, s76, 2')
    a('s_lshl_b32 s4, s4, 12')
    a('s_lshl_b32 s5, s13, 7')
    a('s_add_u32 s4, s4, s5')
    a('s_add_u32 s98, s4, 0x%x' % HFLAG)
    a('s_mul_i32 s5, s3, 3')
    a('s_and_b32 s5, s5, 2')
    a('s_lshl_b32 s5, s5, 6')
    a('s_or_b32 s7, s5, 0x7f')
    stamp(a, 7, low=G2P)
    poll(a, 's98', 's7', low=G2P, addr=47)
    vm.q = []
    for d in ldh(0):
        emit(a, vm, d)
    if not OPT.get('nohtouch'):
        a('s_mov_b32 exec_hi, 0x3fffff')
        emit(a, vm, ['buffer_load_dword v46, v45, %s, s14 offen sc1' % WSR, 'pf'])
        a('s_mov_b32 exec_hi, -1')
    for i in range(1, D - 1):
        for d in ldh(i):
            emit(a, vm, d)
    stamp(a, 8, low=G2P)
    order = ((0, 0), (1, 0), (0, 1), (1, 1), (0, 2))
    no = 0
    for i in range(27):
        a('s_waitcnt vmcnt(%d)' % vm.cnt(('a', i)))
        pend = (ldw(i + D - 1) + ldh(i + D - 1)) if i + D - 1 < 27 else []
        while len(pend) < 6 and no < 30:
            pend.append(ldo(no))
            no += 1
        for k, (T, c) in enumerate(order):
            kk = c if T == 0 else 3 + c
            mfma(a, ACC + 16 * kk, RG[i % D] + 4 * c, RG[i % D] + 12 + 4 * T, c='0' if i == 0 else None)
            if pend:
                emit(a, vm, pend.pop(0))
        for d in pend:
            emit(a, vm, d)
        if i == 13:
            stamp(a, 9, low=G2P)
    assert no == 30
    stamp(a, 10, low=G2P)
    a('s_lshl_b32 s4, s76, 10')
    a('s_lshl_b32 s5, s3, 8')
    a('s_add_u32 s4, s4, s5')
    a('s_add_u32 s98, s4, 0x%x' % OFLAG)
    stamp(a, 11, low=G2P)
    if OPT.get('noA'):
        a('s_waitcnt vmcnt(0)')
    else:
        poll(a, 's98', '3', low=3, addr=47)
    for i in range(10):
        for k in range(2):
            if (i & 3) == 0 and i:
                a('s_add_u32 s%d, s%d, 4096' % (96 + k, 96 + k))
            a('buffer_load_dwordx4 %s, v27, %s, s%d offen offset:%d sc1' % (vr(OB[i] + 4 * k, 4), WSR, 96 + k, (i & 3) * 1024))
    stamp(a, 12)
    for i in range(10):
        if i < 4:
            a('s_waitcnt vmcnt(%d)' % (18 - 2 * i))
        else:
            a('s_waitcnt vmcnt(%d) lgkmcnt(%d)' % (18 - 2 * i, 3 * (min(9, i + 3) - i)))
        b = WP + 12 * (i & 3)
        for k, (T, c) in enumerate(order):
            kk = c if T == 0 else 3 + c
            mfma(a, ACC + 16 * kk, b + 4 * c, OB[i] + 4 * T)
        if i + 4 < 10:
            for c in range(3):
                a('ds_read_b128 %s, v16 offset:%d' % (vr(b + 4 * c, 4), (3 * i + c) * 1024))
    for k in range(5):
        for q in range(4):
            a('ds_write_b128 v%d, %s offset:%d' % (40 + q, vr(ACC + 16 * k + 4 * q, 4), k * 4096))
    a('s_waitcnt lgkmcnt(0)')
    a('s_barrier')
    for k in range(5):
        for w in range(4):
            if w < 3:
                a('ds_read_b128 %s, v29 offset:%d' % (vr(64 + 16 * k + 4 * w, 4), w * 20480 + k * 4096))
            else:
                a('ds_read_b128 %s, v44 offset:%d' % (vr(64 + 16 * k + 4 * w, 4), k * 4096))
    a('s_mov_b32 s4, 0xffff0000')
    for k in range(5):
        b = 64 + 16 * k
        a('v_lshlrev_b32 v48, 16, v%d' % (30 + 2 * k))
        a('v_and_b32 v49, s4, v%d' % (30 + 2 * k))
        a('v_lshlrev_b32 v50, 16, v%d' % (31 + 2 * k))
        a('v_and_b32 v51, s4, v%d' % (31 + 2 * k))
        a('s_waitcnt lgkmcnt(%d)' % min(15, 4 * (4 - k)))
        for h in range(2):
            a('v_pk_add_f32 %s, %s, %s' % (vr(b + 2 * h, 2), vr(b + 2 * h, 2), vr(b + 4 + 2 * h, 2)))
            a('v_pk_add_f32 %s, %s, %s' % (vr(b + 8 + 2 * h, 2), vr(b + 8 + 2 * h, 2), vr(b + 12 + 2 * h, 2)))
        for h in range(2):
            a('v_pk_add_f32 %s, %s, %s' % (vr(b + 2 * h, 2), vr(b + 2 * h, 2), vr(48 + 2 * h, 2)))
        for h in range(2):
            a('v_pk_add_f32 %s, %s, %s' % (vr(b + 2 * h, 2), vr(b + 2 * h, 2), vr(b + 8 + 2 * h, 2)))
        a('v_cvt_pk_bf16_f32 v%d, v%d, v%d' % (b + 4, b, b + 1))
        a('v_cvt_pk_bf16_f32 v%d, v%d, v%d' % (b + 5, b + 2, b + 3))
        a('buffer_store_dwordx2 %s, v28, %s, s%d offen' % (vr(b + 4, 2), OUT, 88 + k))
    if OPT.get('noA') or OPT.get('noG1'):
        a('s_branch L_fin')
        a('L_idle:')
        for i in range(8):
            a('s_sleep 127')
    a('L_fin:')
    stamp_flush(a)
    a('L_end:')
    a('s_endpgm')


HEAD = open('cdna_kernels/%s.s.ref' % NAME).read().split('; Override launch')[0]


def build(verbose=False):
    uid[0] = 0
    a = Asm()
    prologue(a)
    role_kv(a)
    role_a(a)
    role_g1(a)
    role_g2(a)
    n = a.fix(verbose)
    s = HEAD
    s += '; @launch grid=(512,1,1) block=(256,1,1) lds=%d\n' % LDS
    s += '.amdgcn_target "amdgcn-amd-amdhsa--gfx950"\n.text\n.globl %s_kernel\n.p2align 8\n.type %s_kernel,@function\n%s_kernel:\n' % (NAME, NAME, NAME)
    s += a.text()
    s += '''.section .rodata,"a"
.p2align 6
.amdhsa_kernel %s_kernel
  .amdhsa_next_free_vgpr 256
  .amdhsa_next_free_sgpr 102
  .amdhsa_accum_offset 256
  .amdhsa_group_segment_fixed_size 0
  .amdhsa_kernarg_size 96
  .amdhsa_user_sgpr_count 2
  .amdhsa_user_sgpr_kernarg_segment_ptr 1
  .amdhsa_system_sgpr_workgroup_id_x 1
.end_amdhsa_kernel
''' % NAME
    return s, n


if __name__ == '__main__':
    STAMPS[0] = '-s' in sys.argv
    for x in sys.argv[1:]:
        if '=' in x:
            k, v = x.split('=')
            OPT[k] = int(v) if v.lstrip('-').isdigit() else v
    s, n = build(verbose='-v' in sys.argv)
    out = 'cdna_kernels/%s.s' % NAME if 'out' not in OPT else 'gen/%s.s' % OPT['out']
    open(out, 'w').write(s)
    print('nops inserted:', n, 'lines:', s.count('\n'))
```

```python
import sys, math, struct
sys.path.insert(0, 'gen')
from asmlib import Asm

NAME = 'parallel_sum__grouped_kv_mqa__geglu_ffn__prompt'
KVF, KVF_SZ = 0, 32 * 6144
STATS = 0x40000
KFLAG, HFLAG, OFLAG, WFLAG, NONCE = 0x80000, 0xE0000, 0xC0000, 0x98000, 0x53000
AFLAG = 0x9c000
GFLAG = 0xA0000
OF, HF, WT = 0x100000, 0x400000, 0xB00000
WS_SZ = 0xE00000
LDS = 81920
SPIN = 40000


def f2u(x):
    return struct.unpack('<I', struct.pack('<f', x))[0]


LOG2E = 1.4426950408889634
C1 = -2.0 * LOG2E * math.sqrt(2.0 / math.pi)
C2 = C1 * 0.044715
QS = 20 ** -0.5 * LOG2E
OFFSET = 80.0

X, W, WSR, DBG, OUT, W2, KVR = 's[40:43]', 's[44:47]', 's[48:51]', 's[52:55]', 's[56:59]', 's[60:63]', 's[72:75]'
WD = 's[24:27]'


def vr(b, n=1):
    return 'v%d' % b if n == 1 else 'v[%d:%d]' % (b, b + n - 1)


class VM:
    def __init__(self):
        self.q = []

    def issue(self, tag):
        self.q.append(tag)

    def cnt(self, tag):
        idx = max(i for i, t in enumerate(self.q) if t == tag)
        n = len(self.q) - 1 - idx
        self.q = self.q[idx + 1:]
        assert n <= 63
        return n

    def has(self, tag):
        return tag in self.q


def srd(a, s, ptr, size):
    b = int(s[2:s.index(':')])
    a('s_mov_b32 s%d, s%d' % (b, ptr))
    a('s_mov_b32 s%d, s%d' % (b + 1, ptr + 1))
    a('s_mov_b32 s%d, 0x%x' % (b + 2, size))
    a('s_mov_b32 s%d, 0x00020000' % (b + 3))


uid = [0]


def spin_tail(a, L):
    a('s_sleep %d' % OPT.get('sleep', 4))
    a('s_sub_u32 s70, s70, 1')
    a('s_cmp_lg_u32 s70, 0')
    a('s_cbranch_scc1 %s' % L)
    a(L + '_done:')


def poll_issue(a, soff, mask, tmp, addr):
    lo, hi = mask if isinstance(mask, tuple) else (mask, '0')
    return ['s_mov_b32 s66, %s' % lo, 's_mov_b32 s67, %s' % hi, 's_mov_b64 exec, s[66:67]',
            'buffer_load_dword v%d, v%d, %s, %s offen sc1' % (tmp, addr, WSR, soff), 's_mov_b64 exec, -1']


def poll(a, soff, mask, optional=True, tmp=2, low=None, addr=None, issued=False):
    if OPT.get('nopoll') and optional:
        a('s_waitcnt vmcnt(0)')
        return
    uid[0] += 1
    L = 'L_poll%d' % uid[0]
    a('s_mov_b32 s70, %d' % SPIN)
    if low is not None:
        a('s_waitcnt vmcnt(0)')
        prio(a, 3)
    assert addr is not None
    if not issued:
        for y in poll_issue(a, soff, mask, tmp, addr):
            a(y)
    a('s_waitcnt vmcnt(0)')
    a('v_cmp_eq_u32 vcc, s64, v%d' % tmp)
    a('s_and_b64 s[68:69], vcc, s[66:67]')
    a('s_cmp_eq_u64 s[68:69], s[66:67]')
    a('s_cbranch_scc1 %s_done' % L)
    a('s_mov_b64 exec, s[66:67]')
    a('buffer_load_dword v%d, v%d, %s, %s offen sc1' % (tmp, addr, WSR, soff))
    a(L + ':')
    for k in range(2):
        a('s_sleep %d' % OPT.get('sleep', 2))
        a('buffer_load_dword v%d, v%d, %s, %s offen sc1' % (tmp + 1 - k, addr, WSR, soff))
        a('s_waitcnt vmcnt(1)')
        a('v_cmp_eq_u32 vcc, s64, v%d' % (tmp + k))
        a('s_cmp_eq_u64 vcc, s[66:67]')
        a('s_cbranch_scc1 %s_hit' % L)
    a('s_sub_u32 s70, s70, 1')
    a('s_cmp_lg_u32 s70, 0')
    a('s_cbranch_scc1 %s' % L)
    a(L + '_hit:')
    a('s_mov_b64 exec, -1')
    a(L + '_done:')
    if low is not None:
        prio(a, low)


def nonce_load(a, reg):
    return 'buffer_load_dword v%d, off, %s, 0 offset:128 sc1' % (reg, DBG)


def nonce_get(a, reg, loaded):
    uid[0] += 1
    L = 'L_poll%d' % uid[0]
    a('s_mov_b32 s70, %d' % SPIN)
    if loaded:
        a('v_readfirstlane_b32 s64, v%d' % reg)
        a('s_cmp_lg_u32 s64, 0')
        a('s_cbranch_scc1 %s_done' % L)
    a(L + ':')
    a(nonce_load(a, reg))
    a('s_waitcnt vmcnt(0)')
    a('v_readfirstlane_b32 s64, v%d' % reg)
    a('s_cmp_lg_u32 s64, 0')
    a('s_cbranch_scc1 %s_done' % L)
    spin_tail(a, L)


def publish(a, soff):
    a('v_mov_b32 v2, s64')
    a('s_mov_b64 exec, 1')
    a('buffer_store_dword v2, off, %s, %s sc1' % (WSR, soff))
    a('s_mov_b64 exec, -1')


def prio(a, p):
    a('s_setprio %d' % p)


def halves_sum(a, v, t):
    a('v_mov_b32 v%d, v%d' % (t, v))
    a('v_permlane32_swap_b32 v%d, v%d' % (v, t))
    a('v_add_f32 v%d, v%d, v%d' % (v, v, t))


def x_voff(a, d0, d1, srow, t0, t1):
    a('v_lshrrev_b32 v%d, 3, v0' % t0)
    a('v_add_u32 v%d, %s, v%d' % (t0, srow, t0))
    a('v_mul_u32_u24 v%d, 1280, v%d' % (t0, t0))
    a('v_lshrrev_b32 v%d, 4, v0' % t1)
    a('v_xor_b32 v%d, v0, v%d' % (t1, t1))
    a('v_and_b32 v%d, 7, v%d' % (t1, t1))
    a('v_lshl_add_u32 v%d, v%d, 4, v%d' % (d0, t1, t0))
    a('v_xor_b32 v%d, 4, v%d' % (t1, t1))
    a('v_lshl_add_u32 v%d, v%d, 4, v%d' % (d1, t1, t0))


def x_raddr(a, d, base, t0, t1):
    a('v_and_b32 v%d, 31, v0' % t0)
    a('v_lshrrev_b32 v%d, 5, v0' % t1)
    a('v_bfe_u32 v%d, v0, 1, 3' % d)
    a('v_xor_b32 v%d, v%d, v%d' % (t1, t1, d))
    a('v_lshlrev_b32 v%d, 7, v%d' % (t0, t0))
    a('v_add_u32 v%d, %s, v%d' % (t0, base, t0))
    for s in range(4):
        a('v_xor_b32 v%d, %d, v%d' % (d + s, 2 * s, t1))
        a('v_lshl_add_u32 v%d, v%d, 4, v%d' % (d + s, d + s, t0))


def tr_lane(a, drow, dcol, hmul):
    a('v_bfe_u32 v%d, v0, 2, 2' % drow)
    a('v_lshrrev_b32 v%d, 5, v0' % dcol)
    a('v_mul_u32_u24 v%d, %d, v%d' % (dcol, hmul, dcol))
    a('v_add_u32 v%d, v%d, v%d' % (drow, drow, dcol))
    a('v_and_b32 v%d, 3, v0' % dcol)
    a('v_lshlrev_b32 v%d, 3, v%d' % (dcol, dcol))


def divc(a, di, drow, dc, n=12):
    m = {12: 5462, 20: 3277}[n]
    assert all((i * m) >> 16 == i // n for i in range(320))
    a('v_mul_u32_u24 v%d, %d, v%d' % (drow, m, di))
    a('v_lshrrev_b32 v%d, 16, v%d' % (drow, drow))
    a('v_mul_u32_u24 v%d, %d, v%d' % (dc, n, drow))
    a('v_sub_u32 v%d, v%d, v%d' % (dc, di, dc))


MF16 = 'v_mfma_f32_32x32x16_bf16'
MF8 = 'v_mfma_f32_32x32x8_bf16'


def mfma(a, d, x, y, c=None, op=MF16):
    n = 4 if op == MF16 else 2
    a('%s %s, %s, %s, %s' % (op, vr(d, 16), vr(x, n), vr(y, n), vr(d, 16) if c is None else c))


STAMPS = [False]
OPT = {}


def stamp(a, i, low=None):
    if STAMPS[0] and OPT.get('LIGHT') and i not in (0, 15) and i not in [int(x) for x in str(OPT.get('keep', '')).split('_') if x]:
        return
    if STAMPS[0]:
        a('s_waitcnt lgkmcnt(0)')
        a('s_memrealtime s[100:101]')
        a('s_waitcnt lgkmcnt(0)')
        if low is not None:
            prio(a, 3)
        a('v_writelane_b32 v15, s100, %d' % i)
        if low is not None:
            prio(a, low)


def stamp_flush(a):
    if STAMPS[0]:
        stamp(a, 15)
        a('s_memtime s[100:101]')
        a('s_waitcnt lgkmcnt(0)')
        a('v_writelane_b32 v15, s100, 14')
        a('s_mov_b64 exec, 0xffff')
        a('s_lshl_b32 s4, s99, 2')
        a('s_add_u32 s4, s4, s3')
        a('s_lshl_b32 s4, s4, 6')
        a('s_add_u32 s4, s4, 0x60000')
        a('buffer_store_dword v15, v1, %s, s4 offen' % WSR)


def emit(a, vm, d):
    for y in d[:-1]:
        a(y)
    vm.issue(d[-1])


MS = 'v_mfma_f32_16x16x32_bf16'


def sel_ones(a, d, t0, t1):
    a('v_and_b32 v%d, 15, v0' % t0)
    a('v_bfe_u32 v%d, v0, 4, 1' % t1)
    a('v_cmp_eq_u32 vcc, v%d, v%d' % (t0, t1))
    a('v_mov_b32 v%d, 0x3f803f80' % t0)
    for i in range(4):
        a('v_cndmask_b32 v%d, 0, v%d, vcc' % (d + i, t0))


def rowsum(a, d, frag, ones, first=False):
    a('%s %s, %s, %s, %s' % (MS, vr(d, 4), vr(frag, 4), vr(ones, 4), '0' if first else vr(d, 4)))


def rowsum_store(a, d, sbase, t0, t1):
    a('v_and_b32 v%d, 15, v0' % t0)
    a('v_lshrrev_b32 v%d, 4, v0' % t1)
    a('v_cmp_gt_u32 vcc, 2, v%d' % t0)
    a('v_lshl_add_u32 v%d, v%d, 2, v%d' % (t0, t0, t1))
    a('v_lshlrev_b32 v%d, 4, v%d' % (t0, t0))
    a('v_add_u32 v%d, %s, v%d' % (t0, sbase, t0))
    a('s_mov_b64 exec, vcc')
    a('ds_write_b128 v%d, %s' % (t0, vr(d, 4)))
    a('s_mov_b64 exec, -1')


def prologue(a):
    a('s_cmp_ge_u32 s2, 512')
    a('s_cbranch_scc1 L_end')
    a('s_load_dwordx16 s[16:31], s[0:1], 0')
    a('s_load_dwordx8 s[32:39], s[0:1], 64')
    a('v_lshrrev_b32 v1, 6, v0')
    a('v_and_b32 v0, 63, v0')
    a('v_readfirstlane_b32 s3, v1')
    a('v_lshlrev_b32 v1, 2, v0')
    a('s_waitcnt lgkmcnt(0)')
    srd(a, X, 16, 2048 * 1280)
    srd(a, WSR, 38, WS_SZ)
    srd(a, DBG, 36, 256)
    srd(a, OUT, 34, 2048 * 1280)
    srd(a, KVR, 38, KVF_SZ)
    srd(a, W, 18, 640 * 1280)
    if STAMPS[0]:
        a('s_mov_b32 s99, s2')
        a('v_mov_b32 v15, 0')
    stamp(a, 0)
    if not OPT.get('nocodetouch'):
        a('s_getpc_b64 s[8:9]')
        a('s_and_b32 s8, s8, 0xffffff00')
        a('s_mov_b32 s10, CODE_BYTES')
        a('s_mov_b32 s11, 0x00020000')
        a('s_lshr_b32 s4, s2, 3')
        a('s_lshl_b32 s4, s4, 2')
        a('s_add_u32 s4, s4, s3')
        a('s_lshl_b32 s4, s4, 8')
        a('v_lshlrev_b32 v2, 7, v0')
        a('s_mov_b64 exec, 3')
        a('buffer_load_dword v31, v2, s[8:11], s4 offen')
        a('s_mov_b64 exec, -1')
    if STAMPS[0]:
        a('s_memtime s[100:101]')
        a('s_waitcnt lgkmcnt(0)')
        a('v_writelane_b32 v15, s100, 13')
    a('s_cmp_lg_u32 s2, 255')
    a('s_cbranch_scc1 L_nononce')
    a('s_cmp_lg_u32 s3, 0')
    a('s_cbranch_scc1 L_nononce')
    a('s_mov_b32 s4, 0x%x' % NONCE)
    a('buffer_load_dword v2, off, %s, s4 sc1' % WSR)
    a('s_waitcnt vmcnt(0)')
    a('v_add_u32 v2, 1, v2')
    a('v_max_u32 v2, 1, v2')
    a('s_mov_b64 exec, 1')
    a('buffer_store_dword v2, off, %s, 0 offset:128 sc1' % DBG)
    a('buffer_store_dword v2, off, %s, s4 sc1' % WSR)
    a('s_mov_b64 exec, -1')
    a('L_nononce:')
    a('s_sub_u32 s4, s2, 216')
    a('s_cmp_lt_u32 s4, 32')
    a('s_cbranch_scc1 L_roleKV')
    a('s_cmp_lt_u32 s2, 256')
    a('s_cbranch_scc1 %s' % ('L_idle' if OPT.get('noA') else 'L_roleA'))
    a('s_sub_u32 s2, s2, 256')
    a('s_cmp_lt_u32 s2, 216')
    a('s_cbranch_scc1 %s' % ('L_idle' if OPT.get('noG1') else 'L_roleG1'))
    prio(a, 3)
    a('L_getnonce:')
    nonce_get(a, 2, False)
    a('s_lshl_b32 s4, s2, 7')
    a('s_add_u32 s98, s4, 0x%x' % (AFLAG - 216 * 128))
    if not OPT.get('noA'):
        poll(a, 's98', '1', optional=False, addr=1)
        a('s_waitcnt vmcnt(0)')
    a('s_sub_u32 s12, s2, 216')
    a('s_lshl_b32 s13, s12, 2')
    a('s_add_u32 s13, s13, s3')
    a('s_cmp_lt_u32 s13, 148')
    a('s_cbranch_scc0 L_wt_done')
    a('s_sub_u32 s4, s13, 108')
    a('s_mul_i32 s5, s4, 52429')
    a('s_lshr_b32 s5, s5, 18')
    a('s_mul_i32 s6, s5, 5')
    a('s_sub_u32 s6, s4, s6')
    a('s_mul_i32 s5, s5, 80')
    a('s_mul_i32 s7, s6, 20')
    a('s_add_u32 s7, s7, s5')
    a('s_add_u32 s5, s5, 16')
    a('s_cmp_eq_u32 s6, 4')
    a('s_cselect_b32 s7, s5, s7')
    a('s_cselect_b32 s8, 20, 4')
    a('s_lshl_b32 s9, s13, 4')
    a('s_cmp_lt_u32 s13, 108')
    a('s_cselect_b32 s7, s9, s7')
    a('s_cselect_b32 s8, 4, s8')
    a('s_cselect_b32 s44, s32, s24')
    a('s_cselect_b32 s45, s33, s25')
    a('s_mov_b32 s9, %d' % (640 * 1280))
    a('s_cselect_b32 s46, %d, s9' % (1728 * 1280))
    a('s_mul_i32 s7, s7, 1280')
    a('s_mul_i32 s8, s8, 1280')
    a('s_mul_i32 s80, s3, 20480')
    a('v_lshlrev_b32 v27, 4, v0')
    tr_lane(a, 2, 3, 4)
    a('v_mul_u32_u24 v2, 1280, v2')
    a('v_add_u32 v2, v2, v3')
    a('v_bfe_u32 v3, v0, 4, 1')
    a('v_lshl_add_u32 v2, v3, 5, v2')
    a('v_add_u32 v16, s80, v2')
    prio(a, 0)
    for j in range(4):
        a('s_add_u32 m0, s80, %d' % (j * 5120))
        a('s_add_u32 s9, s7, 4096')
        for n in range(4):
            a('buffer_load_dwordx4 v27, %s, s7 offen offset:%d lds' % (W, n * 1024))
        a('s_add_u32 m0, s80, %d' % (j * 5120 + 4096))
        a('s_add_u32 s7, s7, s8')
        a('buffer_load_dwordx4 v27, %s, s9 offen lds' % W)
    CT = OPT.get('ctm', 1)
    a('s_mul_i32 s7, s13, %d' % (1024 if CT else 20480))
    a('s_add_u32 s7, s7, 0x%x' % WT)
    a('s_waitcnt vmcnt(0)')
    for ct in range(20):
        for u in range(2):
            a('ds_read_b64_tr_b16 %s, v16 offset:%d' % (vr(64 + 4 * ct + 2 * u, 2), ct * 64 + u * 10240))
    for ct in range(20):
        a('s_waitcnt lgkmcnt(%d)' % min(15, 38 - 2 * ct))
        a('buffer_store_dwordx4 %s, v27, %s, s7 offen sc1' % (vr(64 + 4 * ct, 4), WSR))
        a('s_add_u32 s7, s7, %d' % (148 * 1024 if CT else 1024))
    a('L_wt_done:')
    a('s_lshl_b32 s4, s12, 7')
    a('s_add_u32 s15, s4, 0x%x' % WFLAG)
    a('s_waitcnt vmcnt(0)')
    a('s_barrier')
    prio(a, 3)
    a('s_cmp_lg_u32 s3, 0')
    a('s_cbranch_scc1 L_wt_pub')
    publish(a, 's15')
    a('L_wt_pub:')
    wprobe_setup(a)
    a('s_mov_b32 s98, 0x%x' % WFLAG)
    a('v_mov_b32 v12, 0')
    a('s_mov_b32 s66, 0x7ff')
    a('s_mov_b32 s67, 0')
    a('s_branch L_roleG2')


def wprobe_setup(a):
    a('s_mul_i32 s4, s3, 27')
    a('s_lshr_b32 s4, s4, 2')
    a('s_mul_i32 s5, s3, 10')
    a('s_add_u32 s5, s5, 76')
    a('s_lshr_b32 s5, s5, 2')
    a('v_mov_b32 v2, s4')
    a('v_mov_b32 v3, s5')
    a('v_cmp_gt_u32 vcc, 8, v0')
    a('v_cndmask_b32 v2, v3, v2, vcc')
    a('v_add_lshl_u32 v14, v2, v0, 7')


def rot_init(a, reg, rot, n, stride):
    a('s_mul_i32 %s, %s, %d' % (reg, rot, stride))


def rot_step(reg, n, stride):
    return ['s_add_u32 %s, %s, %d' % (reg, reg, stride), 's_cmp_eq_u32 %s, %d' % (reg, n * stride), 's_cselect_b32 %s, 0, %s' % (reg, reg)]


def role_kv(a):
    SL = 26624
    SC = 3 * SL
    a('L_roleKV:')
    prio(a, 3)
    a('s_and_b32 s5, s4, 7')
    a('s_lshr_b32 s4, s4, 3')
    a('s_lshl_b32 s5, s5, 2')
    a('s_add_u32 s76, s5, s4')
    a('s_lshl_b32 s77, s76, 6')
    a('s_and_b32 s78, s3, 1')
    a('s_lshr_b32 s79, s3, 1')
    a('s_cmp_eq_u32 s79, 0')
    a('s_cselect_b32 s44, s20, s22')
    a('s_cselect_b32 s45, s21, s23')
    a('s_mov_b32 s46, 25600')
    a('s_lshl_b32 s4, s3, 4')
    a('s_add_u32 s4, s4, s77')
    x_voff(a, 10, 11, 's4', 2, 3)
    a('v_add_u32 v11, 10240, v11')
    a('s_lshl_b32 s4, s78, 11')
    a('v_lshl_add_u32 v12, v0, 4, s4')
    a('s_lshl_b32 s80, s3, 11')
    a('s_mul_i32 s81, s79, 5120')
    a('s_add_u32 s81, s81, s4')
    a('s_add_u32 s81, s81, 16384')
    vm = VM()

    def dma(sb):
        sl = (sb % 3) * SL
        o = []
        for img in range(2):
            for n in range(2):
                o.append(['s_add_u32 m0, s80, %d' % (sl + img * 8192 + n * 1024), 's_mov_b32 s4, %d' % (sb * 256 + img * 128),
                          'buffer_load_dwordx4 v%d, %s, s4 offen lds' % (10 + n, X), sb])
        for i in range(3):
            o.append(['s_add_u32 m0, s81, %d' % sl, 's_mov_b32 s4, %d' % (sb * 5120),
                      'buffer_load_dwordx4 v12, %s, s4 offen offset:%d lds' % (W, i * 1024), sb])
        return o

    for sb in range(3):
        for d in dma(sb):
            emit(a, vm, d)
    a('s_lshl_b32 s4, s78, 12')
    x_raddr(a, 16, 's4', 2, 3)
    tr_lane(a, 2, 3, 8)
    a('v_mul_u32_u24 v2, 40, v2')
    a('v_and_b32 v4, 16, v0')
    a('v_cmp_ne_u32 vcc, 0, v4')
    a('v_cndmask_b32 v3, v3, 32, vcc')
    a('v_add_u32 v2, v2, v3')
    a('s_mul_i32 s4, s79, 5120')
    a('s_add_u32 s4, s4, 16384')
    a('v_add_u32 v20, s4, v2')
    a('v_mov_b32 v21, 0x3f803f80')
    sel_ones(a, 4, 2, 3)
    for r in list(range(22, 30)) + list(range(32, 64)):
        a('v_mov_b32 v%d, 0' % r)
    a('s_cmp_eq_u32 s79, 0')
    a('s_cbranch_scc0 L_kvV')
    vm0 = list(vm.q)
    for kind in range(2):
        vm.q = list(vm0)
        if kind == 1:
            a('L_kvV:')
        for sb in range(6):
            rd = []
            pend = []
            if sb < 5:
                sl = (sb % 3) * SL
                XF, WF = 64 + 64 * (sb & 1), 96 + 64 * (sb & 1)
                a('s_waitcnt vmcnt(%d) lgkmcnt(0)' % vm.cnt(sb))
                a('s_barrier')
                if sb in (0, 3):
                    stamp(a, 7 if sb == 0 else 8)
                for s in range(8):
                    rd.append('ds_read_b128 %s, v%d offset:%d' % (vr(XF + 4 * s, 4), 16 + (s & 3), sl + (s >> 2) * 8192))
                    rd.append('ds_read_b64_tr_b16 %s, v20 offset:%d' % (vr(WF + 4 * s, 2), sl + s * 640))
                    rd.append('ds_read_b64_tr_b16 %s, v20 offset:%d' % (vr(WF + 4 * s + 2, 2), sl + s * 640 + 160))
                if sb in (1, 2):
                    pend = dma(sb + 2)
                if sb == 3:
                    pend = [[nonce_load(a, 13), 'n']]
            else:
                a('s_waitcnt lgkmcnt(0)')
            if sb == 0:
                for y in rd:
                    a(y)
                continue
            XF, WF = 64 + 64 * ((sb - 1) & 1), 96 + 64 * ((sb - 1) & 1)
            for s in range(8):
                if kind == 0:
                    mfma(a, 32, WF + 4 * s, XF + 4 * s)
                else:
                    mfma(a, 32, XF + 4 * s, WF + 4 * s)
                if pend:
                    emit(a, vm, pend.pop(0))
                for y in rd[3 * s:3 * s + 1]:
                    a(y)
                rowsum(a, 26, WF + 4 * s, 4)
                for y in rd[3 * s + 1:3 * s + 2]:
                    a(y)
                if (s & 1) == kind:
                    mfma(a, 48, XF + 4 * s, XF + 4 * s)
                else:
                    rowsum(a, 22, XF + 4 * s, 4)
                for y in rd[3 * s + 2:3 * s + 3]:
                    a(y)
        stamp(a, 9)
        a('s_waitcnt vmcnt(0)')
        nonce_get(a, 13, True)
        a('s_lshl_b32 s4, s78, 8')
        a('s_add_u32 s4, s4, %d' % SC)
        a('s_add_u32 s6, s4, %d' % (kind * 512))
        a('s_lshl_b32 s5, s3, 8')
        a('s_add_u32 s5, s5, %d' % (SC + 1024))
        rowsum_store(a, 22, 's6', 2, 3)
        rowsum_store(a, 26, 's5', 2, 3)
        a('v_and_b32 v4, 31, v0')
        for bit, n, st in ((0, 8, 1), (1, 4, 2), (3, 2, 4), (4, 1, 8)):
            a('v_and_b32 v2, %d, v0' % (1 << bit))
            a('v_cmp_ne_u32 vcc, 0, v2')
            for i in range(n):
                a('v_cndmask_b32 v%d, v%d, v%d, vcc' % (48 + 2 * st * i, 48 + 2 * st * i, 48 + 2 * st * i + st))
        a('v_lshlrev_b32 v4, 2, v4')
        a('v_bfe_u32 v2, v0, 2, 1')
        a('v_lshrrev_b32 v7, 5, v0')
        a('v_cmp_eq_u32 vcc, v2, v7')
        a('v_add_u32 v5, s6, v4')
        a('s_mov_b64 exec, vcc')
        a('ds_write_b32 v5, v48 offset:128')
        a('s_mov_b64 exec, -1')
        a('v_add_u32 v5, s4, v4')
        a('v_add_u32 v6, s5, v4')
        a('v_lshl_add_u32 v7, v7, 4, s5')
        a('s_waitcnt lgkmcnt(0)')
        a('s_barrier')
        a('ds_read2_b32 v[26:27], v5 offset1:32')
        a('ds_read2_b32 v[22:23], v5 offset0:128 offset1:160')
        if kind == 0:
            for q in range(3):
                a('ds_read_b128 %s, v7 offset:%d' % (vr(64 + 4 * q, 4), 32 * q))
        else:
            a('ds_read_b32 v24, v6')
        a('s_mov_b32 s4, 0x%x' % f2u(1.0 / 640))
        a('s_waitcnt lgkmcnt(0)')
        a('v_add_f32 v26, v26, v22')
        a('v_add_f32 v27, v27, v23')
        a('v_mul_f32 v26, s4, v26')
        a('v_mul_f32 v27, s4, v27')
        a('v_fma_f32 v27, -v26, v26, v27')
        a('v_max_f32 v27, 0, v27')
        a('v_add_f32 v27, 0x%x, v27' % f2u(1e-5))
        a('v_sqrt_f32 v30, v27')
        a('v_sub_f32 v28, 0, v26')
        a('v_rcp_f32 v29, v30')
        a('s_lshl_b32 s4, s76, 1')
        a('s_add_u32 s4, s4, s78')
        a('s_mul_i32 s5, s76, 6144')
        a('v_lshlrev_b32 v8, 4, v0')
        if kind == 0:
            a('s_lshl_b32 s4, s4, 9')
            a('s_add_u32 s4, s4, 0x%x' % STATS)
            a('v_lshlrev_b32 v4, 2, v4')
            a('v_mov_b32 v48, v28')
            a('v_mov_b32 v49, s64')
            a('v_mov_b32 v50, v27')
            a('v_mov_b32 v51, s64')
            a('buffer_store_dwordx4 v[48:51], v4, %s, s4 offen sc1' % WSR)
            for i in range(12):
                a('v_fma_f32 v%d, v28, v%d, v%d' % (32 + i, 64 + i, 32 + i))
            for i in range(12):
                a('v_mul_f32 v%d, v29, v%d' % (32 + i, 32 + i))
            for i in range(6):
                a('v_cvt_pk_bf16_f32 v%d, v%d, v%d' % (80 + i, 32 + 2 * i, 33 + 2 * i))
            a('v_cmp_lt_u32 vcc, 31, v0')
            a('v_mov_b32 v2, 0x3f80')
            a('v_cndmask_b32 v84, v84, v21, vcc')
            a('v_cndmask_b32 v85, v85, v2, vcc')
            a('s_lshl_b32 s6, s78, 10')
            a('s_add_u32 s6, s6, s5')
            a('s_lshl_b32 s7, s78, 3')
            a('s_add_u32 s7, s7, s5')
            a('buffer_store_dwordx4 v[80:83], v8, %s, s6 offen sc1' % WSR)
            a('buffer_store_dwordx2 v[84:85], v8, %s, s7 offen offset:2048 sc1' % WSR)
        else:
            a('v_mul_f32 v28, v28, v29')
            a('ds_write_b32 v6, v28')
            a('ds_write_b32 v6, v29 offset:128')
            a('s_waitcnt lgkmcnt(0)')
            for q in range(4):
                a('ds_read_b128 %s, v7 offset:%d' % (vr(64 + 4 * q, 4), 32 * q))
                a('ds_read_b128 %s, v7 offset:%d' % (vr(80 + 4 * q, 4), 128 + 32 * q))
            a('v_and_b32 v2, 31, v0')
            a('v_cmp_gt_u32 vcc, 20, v2')
            a('v_cmp_eq_u32 s[6:7], 20, v2')
            a('v_cndmask_b32 v3, 0, v21, s[6:7]')
            a('s_waitcnt lgkmcnt(0)')
            for i in range(16):
                a('v_mul_f32 v%d, v24, v%d' % (64 + i, 64 + i))
            for i in range(16):
                a('v_fma_f32 v%d, v%d, v%d, v%d' % (32 + i, 32 + i, 80 + i, 64 + i))
            for i in range(8):
                a('v_cvt_pk_bf16_f32 v%d, v%d, v%d' % (96 + i, 32 + 2 * i, 33 + 2 * i))
            for i in range(8):
                a('v_cndmask_b32 v%d, v3, v%d, vcc' % (96 + i, 96 + i))
            a('v_lshrrev_b32 v9, 5, v0')
            a('v_mul_u32_u24 v9, 128, v9')
            a('v_sub_u32 v8, v8, v9')
            a('s_mul_i32 s6, s78, 1536')
            a('s_add_u32 s5, s5, s6')
            a('s_mov_b32 exec_lo, 0xffffff')
            a('s_mov_b32 exec_hi, 0xffffff')
            a('buffer_store_dwordx4 v[96:99], v8, %s, s5 offen offset:3072 sc1' % WSR)
            a('buffer_store_dwordx4 v[100:103], v8, %s, s5 offen offset:3840 sc1' % WSR)
            a('s_mov_b64 exec, -1')
        if kind == 0:
            a('s_branch L_kvpub')
    a('L_kvpub:')
    a('s_waitcnt vmcnt(0)')
    a('s_barrier')
    stamp(a, 11)
    a('s_mov_b32 s44, s18')
    a('s_mov_b32 s45, s19')
    a('s_mov_b32 s46, %d' % (640 * 1280))
    nxt = 'L_idle' if OPT.get('noA') else 'L_roleA2'
    a('s_cmp_lg_u32 s3, 0')
    a('s_cbranch_scc1 %s' % nxt)
    a('s_lshl_b32 s4, s76, 7')
    a('s_add_u32 s4, s4, 0x%x' % KFLAG)
    publish(a, 's4')
    a('s_branch %s' % nxt)


def asig(a, lo, hi, k):
    a('s_sub_u32 s6, s2, %d' % lo)
    a('s_cmp_lt_u32 s6, %d' % (hi - lo))
    a('s_cbranch_scc0 L_a_nosig%d' % k)
    a('s_cmp_lg_u32 s3, 0')
    a('s_cbranch_scc1 L_a_nosig%d' % k)
    a('s_lshl_b32 s6, s2, 7')
    a('s_add_u32 s6, s6, 0x%x' % (AFLAG - 216 * 128))
    publish(a, 's6')
    a('L_a_nosig%d:' % k)


def role_a(a):
    SL = 20480
    a('L_roleA:')
    prio(a, 2)
    ntouch0 = 0
    if not OPT.get('not0'):
        a('s_lshr_b32 s5, s2, 3')
        a('s_min_u32 s5, s5, 27')
        a('s_lshl_b32 s5, s5, 2')
        a('s_add_u32 s5, s5, s3')
        a('v_lshlrev_b32 v2, 7, v0')
        if OPT.get('lay2', 2) == 1:
            a('s_bfe_u32 s4, s2, 0x10002')
            a('s_mul_i32 s4, s4, %d' % (1024 * 1280))
            a('s_mul_i32 s6, s5, %d' % (92 * 128))
            a('s_add_u32 s4, s4, s6')
            a('buffer_load_dword v31, v2, %s, s4 offen' % X)
            a('s_add_u32 s4, s4, 8192')
            a('s_mov_b64 exec, 0xfffffff')
            a('buffer_load_dword v31, v2, %s, s4 offen' % X)
        else:
            a('s_and_b32 s4, s2, 7')
            a('s_mul_i32 s4, s4, %d' % (256 * 1280))
            a('s_mul_i32 s6, s5, %d' % (23 * 128))
            a('s_add_u32 s4, s4, s6')
            a('s_mov_b64 exec, 0x7fffff')
            a('buffer_load_dword v31, v2, %s, s4 offen' % X)
        a('s_bitcmp1_b32 s5, 0')
        a('s_cselect_b32 s8, s20, s22')
        a('s_cselect_b32 s9, s21, s23')
        a('s_mov_b32 s10, 25600')
        a('s_mov_b32 s11, 0x00020000')
        a('s_lshr_b32 s6, s5, 1')
        a('s_lshl_b32 s6, s6, 9')
        a('s_mov_b64 exec, 0xf')
        a('buffer_load_dword v31, v2, s[8:11], s6 offen')
        if OPT.get('lay2', 2):
            a('s_mov_b64 exec, -1')
            a('s_mul_i32 s6, s5, 18')
            a('v_add_u32 v3, s6, v0')
            a('v_mul_u32_u24 v4, 21846, v3')
            a('v_lshrrev_b32 v4, 16, v4')
            a('v_mul_u32_u24 v5, %d, v4' % (1280 - 3 * 128))
            a('v_lshl_add_u32 v3, v3, 7, v5')
            a('s_and_b32 s6, s2, 3')
            a('s_mul_i32 s6, s6, 320')
            a('s_and_b32 s6, s6, 0xffffff80')
            a('s_mov_b64 exec, 0x3ffff')
            a('buffer_load_dword v31, v3, %s, s6 offen' % W)
        else:
            a('s_mul_i32 s6, s5, %d' % (58 * 128))
            a('s_mov_b32 exec_lo, -1')
            a('s_mov_b32 exec_hi, 0x3ffffff')
            a('buffer_load_dword v31, v2, %s, s6 offen' % W)
        a('s_mov_b64 exec, -1')
    a('L_roleA2:')
    prio(a, 2)
    if OPT.get('lay2', 2):
        a('s_and_b32 s4, s2, 3')
        a('s_lshl_b32 s4, s4, 1')
        a('s_bfe_u32 s5, s2, 0x10003')
        a('s_add_u32 s79, s4, s5')
        a('s_lshr_b32 s5, s2, 4')
        a('s_and_b32 s4, s2, 4')
        a('s_lshl_b32 s4, s4, 2')
        a('s_add_u32 s76, s4, s5')
    else:
        a('s_and_b32 s4, s2, 7')
        a('s_lshr_b32 s5, s2, 3')
        a('s_and_b32 s79, s5, 7')
        a('s_lshr_b32 s5, s5, 3')
        a('s_lshl_b32 s4, s4, 2')
        a('s_add_u32 s76, s4, s5')
    a('s_lshl_b32 s77, s76, 6')
    a('s_lshl_b32 s4, s3, 4')
    a('s_add_u32 s4, s4, s77')
    x_voff(a, 10, 11, 's4', 2, 3)
    a('v_add_u32 v11, 10240, v11')
    a('s_mul_i32 s4, s3, %d' % (16 * 1280))
    a('s_mul_i32 s5, s79, 160')
    a('s_add_u32 s4, s4, s5')
    a('s_lshl_b32 s80, s3, 11')
    a('s_mul_i32 s81, s3, 3072')
    a('s_add_u32 s81, s81, 8192')
    vm = VM()

    a('s_and_b32 s6, s76, 3')
    a('s_mul_i32 s6, s6, 5')
    a('s_lshr_b32 s6, s6, 1')
    a('s_mul_i32 s7, s79, %d' % OPT.get('rota', 3))
    a('s_add_u32 s6, s6, s7')
    a('s_mul_i32 s7, s6, 6554')
    a('s_lshr_b32 s7, s7, 16')
    a('s_mul_i32 s7, s7, 10')
    a('s_sub_u32 s6, s6, s7')
    if not OPT.get('rot'):
        a('s_mov_b32 s6, 0')
    rot_init(a, 's88', 's6', 10, 128)
    rot_init(a, 's89', 's6', 10, 81920)

    def dmax(jb):
        sl = (jb & 3) * SL
        o = [['s_add_u32 m0, s80, %d' % (sl + n * 1024), 's_nop 0',
              'buffer_load_dwordx4 v%d, %s, s88 offen lds' % (10 + n, X), jb] for n in range(2)]
        o[1][3:3] = rot_step('s88', 10, 128)
        return o

    def dmaw(jb):
        sl = (jb & 3) * SL
        o = [['s_add_u32 m0, s81, %d' % (sl + n * 1024), 's_nop 0',
              'buffer_load_dwordx4 v%d, %s, s89 offen lds' % (12 + n, W), jb] for n in range(3)]
        o[2][3:3] = rot_step('s89', 10, 81920)
        return o

    if OPT.get('aw'):
        a('s_waitcnt vmcnt(0)')
    for d in dmax(0):
        emit(a, vm, d)
    a('v_mov_b32 v5, 0x40000000')
    for n in range(3):
        a('v_add_u32 v2, %d, v0' % (64 * n))
        divc(a, 2, 3, 4)
        a('v_cmp_lt_u32 vcc, 9, v4')
        a('v_mul_u32_u24 v3, 1280, v3')
        a('v_lshl_add_u32 v3, v4, 4, v3')
        a('v_add_u32 v3, s4, v3')
        a('v_cndmask_b32 v%d, v3, v5, vcc' % (12 + n))
    for d in dmaw(0) + sum([dmax(jb) + dmaw(jb) for jb in range(1, 4)], []):
        emit(a, vm, d)
    if OPT.get('st2'):
        stamp(a, 7)
    x_raddr(a, 16, '0', 2, 3)
    for s in range(4):
        a('v_add_u32 v%d, %d, v%d' % (20 + s, 2 * SL, 16 + s))
    tr_lane(a, 2, 3, 8)
    a('v_mul_u32_u24 v2, 192, v2')
    a('v_bfe_u32 v4, v0, 4, 1')
    a('v_lshl_add_u32 v3, v4, 5, v3')
    a('v_cmp_lt_u32 vcc, 39, v3')
    a('s_mul_i32 s4, s3, 40')
    a('v_add_u32 v3, s4, v3')
    a('v_mov_b32 v4, 160')
    a('v_cndmask_b32 v3, v3, v4, vcc')
    a('v_add_u32 v2, 8192, v2')
    a('v_add_u32 v24, v2, v3')
    a('v_add_u32 v25, %d, v24' % (2 * SL))
    sel_ones(a, 4, 2, 3)
    for r in list(range(32, 64)) + [26, 27, 28, 29]:
        a('v_mov_b32 v%d, 0' % r)

    for jb in range(11):
        if jb < 10:
            a('s_waitcnt vmcnt(%d) lgkmcnt(0)' % vm.cnt(jb))
        else:
            a('s_waitcnt lgkmcnt(0)')
        a('s_barrier')
        if jb in (0, 4):
            stamp(a, 1 if jb == 0 else 2)
        if OPT.get('st2') and jb in (2, 7):
            stamp(a, 8 if jb == 2 else 9)
        rd = []
        pend = []
        if jb < 10:
            sl = (jb & 1) * SL
            hi = (jb & 2) != 0
            b = 64 + 48 * (jb & 1)
            for s in range(4):
                for t in range(2):
                    rd.append('ds_read_b128 %s, v%d offset:%d' % (vr(b + 8 * s + 4 * t, 4), (20 if hi else 16) + s, sl + t * 4096))
                for u in range(2):
                    rd.append('ds_read_b64_tr_b16 %s, v%d offset:%d' % (vr(b + 32 + 4 * s + 2 * u, 2), 25 if hi else 24, sl + s * 3072 + u * 768))
            if 1 <= jb <= 6:
                pend = dmax(jb + 3) + dmaw(jb + 3)
            if OPT.get('gate') and jb == 1:
                pend = [[nonce_load(a, 30), 'n']] + pend
            if OPT.get('gate') and jb == OPT['gate']:
                nonce_get(a, 30, True)
                a('s_cmp_lg_u32 s3, 0')
                a('s_cbranch_scc1 L_a_gated')
                a('s_lshl_b32 s6, s2, 7')
                a('s_add_u32 s6, s6, 0x%x' % GFLAG)
                publish(a, 's6')
                a('L_a_gated:')
            if OPT.get('asig', 1) == 2 and jb == OPT.get('asj', 2):
                asig(a, 216, 248, 2)
            if jb == 7:
                pend = [[nonce_load(a, 30), 'n']]
                a('v_lshlrev_b32 v14, 7, v0')
                a('s_mov_b32 s98, 0x%x' % KFLAG)
        if jb == 10:
            pend = [poll_issue(a, 's98', '-1', 8, 14) + ['p']]
        if jb == 0:
            for y in rd:
                a(y)
            continue
        b = 64 + 48 * ((jb - 1) & 1)
        k = 0
        for s in range(4):
            wf = b + 32 + 4 * s
            for t in range(2):
                mfma(a, 32 + 16 * t, wf, b + 8 * s + 4 * t)
                if pend:
                    emit(a, vm, pend.pop(0))
                for y in rd[2 * k:2 * k + 1]:
                    a(y)
                if t == 0:
                    rowsum(a, 26, wf, 4)
                for y in rd[2 * k + 1:2 * k + 2]:
                    a(y)
                k += 1
    PRIV = 57344
    CH = 24576
    Q1 = [160, 166]
    Q2 = [164, 170]
    O = [176, 192]
    S = [64, 80]
    P = [96, 104]
    K1 = [112, 116]
    K2 = [140, 144]
    V = [124, 132]
    M = [12, 13]
    a('s_lshl_b32 s5, s3, 7')
    a('s_add_u32 s5, s5, %d' % PRIV)
    rowsum_store(a, 26, 's5', 2, 3)
    a('v_and_b32 v4, 31, v0')
    a('v_lshrrev_b32 v7, 5, v0')
    a('v_mul_u32_u24 v11, 384, v7')
    a('v_min_u32 v5, %d, v4' % (31 if OPT.get('vgarb') else 23))
    a('v_lshl_add_u32 v11, v5, 4, v11')
    a('v_lshl_add_u32 v7, v7, 4, s5')
    a('s_waitcnt lgkmcnt(0)')
    for q in range(3):
        a('ds_read_b128 %s, v7 offset:%d' % (vr(64 + 4 * q, 4), 32 * q))
    a('v_lshlrev_b32 v10, 4, v0')
    a('v_lshlrev_b32 v4, 4, v4')
    a('v_cmp_gt_u32 s[84:85], 32, v0')
    for r in list(range(O[0], O[0] + 32)) + list(range(P[1], P[1] + 8)) + list(range(V[1], V[1] + 8)):
        a('v_mov_b32 v%d, 0' % r)
    a('s_mul_i32 s80, s3, 6144')
    a('s_lshl_b32 s4, s76, 10')
    a('s_add_u32 s4, s4, 0x%x' % STATS)
    stamp(a, 3)
    a('s_waitcnt vmcnt(0)')
    nonce_get(a, 30, True)
    if OPT.get('asig', 1) >= 1:
        asig(a, 216 if OPT.get('asig', 1) == 1 else 248, 256, 1)
    a('s_cmp_lg_u32 s3, 0')
    a('s_cbranch_scc1 L_a_polled')
    poll(a, 's98', '-1', optional=False, addr=14, tmp=8, issued=True)
    a('L_a_polled:')
    a('s_waitcnt lgkmcnt(0)')
    a('s_barrier')
    stamp(a, 4)

    def kvdma_groups(slot):
        g = []
        for i in range(6):
            x = ['s_add_u32 m0, s80, %d' % (slot * CH + (i >> 2) * 4096),
                 'global_load_lds_dwordx4 v10, s[88:89] offset:%d sc1' % ((i & 3) * 1024)]
            if i == 3:
                x += ['s_add_u32 s88, s88, 4096', 's_addc_u32 s89, s89, 0']
            if i == 5:
                x += ['s_add_u32 s88, s88, s90', 's_addc_u32 s89, s89, s91']
            g.append(x)
        return g

    a('s_add_u32 s88, s38, s80')
    a('s_addc_u32 s89, s39, 0')
    a('s_mov_b32 s90, %d' % (CH - 4096))
    a('s_mov_b32 s91, 0')
    a('buffer_load_dwordx4 v[80:83], v4, %s, s4 offen sc1' % WSR)
    a('buffer_load_dwordx4 v[84:87], v4, %s, s4 offen offset:512 sc1' % WSR)
    a('buffer_load_dwordx4 %s, v10, %s, 0 offen sc1' % (vr(K1[0], 4), KVR))
    a('buffer_load_dwordx4 %s, v10, %s, 0 offen offset:2048 sc1' % (vr(K2[0], 4), KVR))
    a('buffer_load_dwordx4 %s, v10, %s, 0 offen offset:1024 sc1' % (vr(K1[1], 4), KVR))
    for x in sum(kvdma_groups(0), []) + kvdma_groups(1)[0]:
        a(x)
    a('s_lshr_b32 s5, s2, 3')
    a('s_lshl_b32 s5, s5, 2')
    a('s_add_u32 s5, s5, s3')
    a('s_mul_i32 s5, s5, %d' % (12 * 128))
    a('s_mov_b64 exec, 0xfff')
    a('buffer_load_dword v31, v14, %s, s5 offen sc1' % KVR)
    a('s_mov_b64 exec, -1')
    a('s_mov_b32 s4, 0x%x' % f2u(QS))
    a('s_waitcnt vmcnt(11)')
    for t in range(2):
        a('v_rsq_f32 v%d, v%d' % (81 + 4 * t, 82 + 4 * t))
        for i in range(12):
            a('v_fma_f32 v%d, v%d, v%d, v%d' % (32 + 16 * t + i, 80 + 4 * t, 64 + i, 32 + 16 * t + i))
        a('v_mul_f32 v%d, s4, v%d' % (81 + 4 * t, 81 + 4 * t))
        for i in range(12):
            a('v_mul_f32 v%d, v%d, v%d' % (32 + 16 * t + i, 81 + 4 * t, 32 + 16 * t + i))
        for i in range(6):
            a('v_cvt_pk_bf16_f32 v%d, v%d, v%d' % (Q1[t] + i, 32 + 16 * t + 2 * i, 33 + 16 * t + 2 * i))
        for i in range(2):
            a('v_cndmask_b32 v%d, 0, v%d, s[84:85]' % (Q2[t] + i, Q2[t] + i))

    def toff(j):
        return ((j >> 3) & 1) * CH + ((j & 7) >> 1) * 6144

    def rdK(j):
        o = ['ds_read_b128 %s, v10 offset:%d' % (vr(K1[j & 1], 4), toff(j) + (j & 1) * 1024)]
        if (j & 1) == 0:
            o.append('ds_read_b128 %s, v10 offset:%d' % (vr(K2[(j >> 1) & 1], 4), toff(j) + 2048))
        return o

    def rdV(j):
        return ['ds_read_b128 %s, v11 offset:%d' % (vr(V[j & 1] + 4 * i, 4), toff(j) + 3072 + (j & 1) * 1536 + i * 768) for i in range(2)]

    def smf(dst, j, q):
        return ['%s %s, %s, %s, 0' % (MF16, vr(dst, 16), vr(K1[j & 1], 4), vr(Q1[q], 4)),
                '%s %s, %s, %s, %s' % (MF8, vr(dst, 16), vr(K2[(j >> 1) & 1] + 2 * (j & 1), 2), vr(Q2[q], 2), vr(dst, 16))]

    def pvf(q, vb):
        return ['%s %s, %s, %s, %s' % (MF16, vr(O[q], 16), vr(V[vb] + 4 * i, 4), vr(P[q] + 4 * i, 4), vr(O[q], 16)) for i in range(2)]

    def maxtree(m, s, first):
        if first:
            a('v_max3_f32 v%d, v%d, v%d, v%d' % (m, s, s + 1, s + 2))
            a('v_max_f32 v%d, v%d, v%d' % (m, m, s + 3))
            k = 4
        else:
            k = 0
        while k < 16:
            a('v_max3_f32 v%d, v%d, v%d, v%d' % (m, m, s + k, s + k + 1))
            k += 2

    def setshift(q, off):
        m = M[q]
        a('v_mov_b32 v2, v%d' % m)
        a('v_permlane32_swap_b32 v%d, v2' % m)
        a('v_max_f32 v%d, v%d, v2' % (m, m))
        a('v_sub_f32 v2, 0x%x, v%d' % (f2u(-off), m))
        a('v_and_b32 v3, s4, v2')
        a('v_sub_f32 v2, v2, v3')
        a('v_and_b32 v4, s4, v2')
        a('v_sub_f32 v2, v2, v4')
        a('v_lshrrev_b32 v3, 16, v3')
        a('v_or_b32 v3, v3, v4')
        a('v_lshrrev_b32 v2, 16, v2')
        a('v_cndmask_b32 v%d, v3, v%d, s[84:85]' % (Q2[q], Q2[q]))
        a('v_cndmask_b32 v%d, v2, v%d, s[84:85]' % (Q2[q] + 1, Q2[q] + 1))

    a('s_mov_b32 s83, 0')
    a('s_waitcnt vmcnt(8)')
    stamp(a, 5)
    for j, q, d in ((0, 0, S[0]), (1, 0, 32), (0, 1, S[1]), (1, 1, 48)):
        for x in smf(d, j, q):
            a(x)
    a('s_mov_b32 s4, 0xffff0000')
    maxtree(M[0], S[0], True)
    maxtree(M[0], 32, False)
    setshift(0, float(OPT.get('off', 96)))
    for x in smf(S[0], 0, 0):
        a(x)
    maxtree(M[1], S[1], True)
    maxtree(M[1], 48, False)
    setshift(1, float(OPT.get('off', 96)))
    a('s_waitcnt vmcnt(2)')
    a('s_barrier')
    for x in rdV(0):
        a(x)
    if OPT.get('asig', 1) == 0:
        asig(a, 216, 256, 0)
    stamp(a, 6)
    if STAMPS[0]:
        a('s_memtime s[100:101]')
        a('s_waitcnt lgkmcnt(0)')
        a('v_writelane_b32 v15, s100, 12')
    a('s_mov_b32 s86, 4')
    if 'aprio' in OPT:
        prio(a, OPT['aprio'])
    a('.p2align 6')
    a('L_a_loop:')
    pat = OPT.get('pat', 'eeeMLLXeceMeceeceeceMDeceeceecMwc')
    order = [int(ch) for ch in str(OPT.get('order', 'o0123'))[1:]]
    assert pat.count('e') == 16 and pat.count('c') == 8 and pat.count('M') == 4
    sx, sd = {}, {}
    for base, sl in ((15, 0), (31, 1)):
        for i, g in enumerate(kvdma_groups(sl)):
            k = (base + 2 * i) % 32
            sx.setdefault(k, []).append(g[0])
            sd[k] = g[1]
            sx.setdefault((k + 1) % 32, []).extend(g[2:])
    sx.setdefault(2, []).extend(['s_cmp_eq_u32 s86, 1', 's_cselect_b32 s91, -1, 0'])
    sx.setdefault(4, []).extend(['s_cmp_eq_u32 s86, 1', 's_cselect_b32 s90, -4096, s90'])
    for j in range(16):
        for q in range(2):
            ex = list(sx.get(2 * j + q, []))
            dm_ = sd.get(2 * j + q)
            if q == 0:
                if (j & 7) == 7:
                    a('s_waitcnt vmcnt(0) lgkmcnt(0)')
                    a('s_barrier')
                rd = rdK(j + 1)
                ms = smf(S[1], j, 1) + pvf(1, (j - 1) & 1)
            else:
                rd = rdV(j + 1)
                ms = smf(S[0], j + 1, 0) + pvf(0, j & 1)
            ms = [ms[i] for i in order]
            e = c = 0
            for x in pat:
                if x == 'M':
                    y = ms.pop(0)
                    if not (OPT.get('nos2') and 'x8_bf16' in y):
                        a(y)
                elif x == 'e':
                    a('v_exp_f32 v%d, v%d' % (S[q] + e, S[q] + e))
                    e += 1
                elif x == 'c':
                    assert 2 * c + 1 < e
                    a('v_cvt_pk_bf16_f32 v%d, v%d, v%d' % (P[q] + c, S[q] + 2 * c, S[q] + 2 * c + 1))
                    c += 1
                elif x == 'L':
                    if rd:
                        a(rd.pop(0))
                elif x == 'w':
                    if q == 0:
                        a('s_waitcnt lgkmcnt(0)')
                elif x == 'N':
                    a('s_nop 0')
                elif x == 'X':
                    if ex:
                        a(ex.pop(0))
                elif x == 'D':
                    if dm_:
                        a(dm_)
                    elif ex:
                        a(ex.pop(0))
            assert not rd and not ex
    if STAMPS[0] and OPT.get('loopstamps'):
        a('s_memrealtime s[100:101]')
        a('s_sub_u32 m0, 11, s86')
        a('s_waitcnt lgkmcnt(0)')
        a('v_writelane_b32 v15, s100, m0')
    a('s_sub_u32 s86, s86, 1')
    a('s_cmp_lg_u32 s86, 0')
    a('s_cbranch_scc1 L_a_loop')
    for x in pvf(1, 1):
        a(x)
    if STAMPS[0]:
        a('s_memtime s[100:101]')
        a('s_waitcnt lgkmcnt(0)')
        a('v_readlane_b32 s4, v15, 12')
        a('s_sub_u32 s4, s100, s4')
        a('v_writelane_b32 v15, s4, 12')
    stamp(a, 10)
    a('L_a_out:')
    a('s_lshl_b32 s4, s76, 1')
    a('s_mul_i32 s4, s4, 40960')
    a('s_mul_i32 s5, s79, 5120')
    a('s_add_u32 s4, s4, s5')
    a('s_add_u32 s4, s4, 0x%x' % OF)
    a('s_lshl_b32 s5, s3, 10')
    a('s_add_u32 s5, s5, s4')
    a('s_and_b32 s6, s3, 1')
    a('s_lshl_b32 s6, s6, 9')
    a('s_lshr_b32 s7, s3, 1')
    a('s_lshl_b32 s7, s7, 3')
    a('s_add_u32 s6, s6, s7')
    a('s_add_u32 s6, s6, s4')
    a('s_add_u32 s6, s6, 4096')
    a('s_mov_b32 s8, 0x7f000000')
    a('s_mov_b32 s87, 0x%x' % f2u(2.0 ** -110))
    for q in range(2):
        o = O[q]
        a('v_mov_b32 v2, v%d' % (o + 8))
        a('v_mov_b32 v3, v%d' % (o + 8))
        a('v_add_f32 v%d, abs(v%d), abs(v%d)' % (5 + q, o, o + 8))
        a('v_permlane32_swap_b32 v2, v3')
        a('v_rcp_f32 v3, v3')
        for i in (1, 2, 3):
            a('v_add_f32 v%d, v%d, abs(v%d)' % (5 + q, 5 + q, o + i))
        a('v_mov_b32 v2, v3')
        for i in range(0, 12, 2):
            a('v_pk_mul_f32 %s, %s, v[2:3]' % (vr(32 + 16 * q + i, 2), vr(o + i, 2)))
        for i in range(6):
            a('v_cvt_pk_bf16_f32 v%d, v%d, v%d' % (64 + 8 * q + i, 32 + 16 * q + 2 * i, 33 + 16 * q + 2 * i))
        a('buffer_store_dwordx4 %s, v10, %s, s5 offen sc1' % (vr(64 + 8 * q, 4), WSR))
        a('s_mov_b64 exec, s[84:85]')
        a('buffer_store_dwordx2 %s, v10, %s, s6 offen sc1' % (vr(68 + 8 * q, 2), WSR))
        a('s_mov_b64 exec, -1')
        if q == 0:
            a('s_add_u32 s5, s5, 40960')
            a('s_add_u32 s6, s6, 40960')
    for q in range(2):
        for i in (4, 5, 6, 7, 9, 10, 11):
            a('v_add_f32 v%d, v%d, abs(v%d)' % (5 + q, 5 + q, O[q] + i))
    a('v_min_f32 v7, v5, v6')
    a('v_cmp_gt_f32 vcc, s8, v5')
    a('v_cmp_gt_f32 s[10:11], s8, v6')
    a('v_cmp_lt_f32 s[12:13], s87, v7')
    a('s_lshl_b32 s4, s76, 5')
    a('s_lshl_b32 s7, s79, 2')
    a('s_add_u32 s4, s4, s7')
    a('s_add_u32 s4, s4, s3')
    a('s_lshl_b32 s4, s4, 7')
    a('s_add_u32 s98, s4, 0x%x' % OFLAG)
    a('v_mov_b32 v2, s64')
    a('s_and_b64 s[10:11], s[10:11], vcc')
    a('s_and_b64 s[10:11], s[10:11], s[12:13]')
    a('s_cmp_eq_u64 s[10:11], -1')
    a('s_cselect_b32 s4, 1, s83')
    a('s_cmp_eq_u32 s4, 0')
    if not OPT.get('nofb'):
        a('s_cbranch_scc1 L_a_fallback')
    a('s_sub_u32 s5, s5, 40960')
    a('v_lshrrev_b32 v4, 3, v0')
    a('v_mul_u32_u24 v4, %d, v4' % (40960 - 1024))
    a('v_add_u32 v4, v4, v14')
    stamp(a, 11)
    a('s_waitcnt vmcnt(0)')
    a('s_mov_b64 exec, 1')
    a('buffer_store_dword v2, off, %s, s98 sc1' % WSR)
    if OPT.get('otouch'):
        a('s_mov_b64 exec, 0xffff')
        a('buffer_load_dword v3, v4, %s, s5 offen sc1' % WSR)
    a('s_branch L_fin')
    a('L_a_fallback:')
    a('s_mov_b32 s83, 1')
    for q in range(2):
        a('v_mov_b32 v%d, 0xff800000' % M[q])
        for i in range(2):
            a('v_cndmask_b32 v%d, 0, v%d, s[84:85]' % (Q2[q] + i, Q2[q] + i))
    a('s_mov_b32 s87, 0')
    a('L_a_fb1:')
    a('buffer_load_dwordx4 %s, v10, %s, s87 offen sc1' % (vr(K1[0], 4), KVR))
    a('buffer_load_dwordx4 %s, v10, %s, s87 offen offset:1024 sc1' % (vr(K1[1], 4), KVR))
    a('buffer_load_dwordx4 %s, v10, %s, s87 offen offset:2048 sc1' % (vr(K2[0], 4), KVR))
    a('s_waitcnt vmcnt(0)')
    for j in range(2):
        for q in range(2):
            for x in smf(S[q], j, q):
                a(x)
        for q in range(2):
            maxtree(M[q], S[q], False)
    a('s_add_u32 s87, s87, 6144')
    a('s_cmp_lt_u32 s87, %d' % KVF_SZ)
    a('s_cbranch_scc1 L_a_fb1')
    a('s_mov_b32 s4, 0xffff0000')
    setshift(0, 0.0)
    setshift(1, 0.0)
    for r in range(O[0], O[0] + 32):
        a('v_mov_b32 v%d, 0' % r)
    a('s_mov_b32 s87, 0')
    a('L_a_fb2:')
    a('buffer_load_dwordx4 %s, v10, %s, s87 offen sc1' % (vr(K1[0], 4), KVR))
    a('buffer_load_dwordx4 %s, v10, %s, s87 offen offset:1024 sc1' % (vr(K1[1], 4), KVR))
    a('buffer_load_dwordx4 %s, v10, %s, s87 offen offset:2048 sc1' % (vr(K2[0], 4), KVR))
    a('s_add_u32 s86, s87, 3072')
    for j in range(2):
        for i in range(2):
            a('buffer_load_dwordx4 %s, v11, %s, s86 offen offset:%d sc1' % (vr(V[j] + 4 * i, 4), KVR, j * 1536 + i * 768))
    a('s_waitcnt vmcnt(0)')
    for j in range(2):
        for q in range(2):
            for x in smf(S[q], j, q):
                a(x)
        for q in range(2):
            for e in range(16):
                a('v_exp_f32 v%d, v%d' % (S[q] + e, S[q] + e))
            for c in range(8):
                a('v_cvt_pk_bf16_f32 v%d, v%d, v%d' % (P[q] + c, S[q] + 2 * c, S[q] + 2 * c + 1))
            for x in pvf(q, j):
                a(x)
    a('s_add_u32 s87, s87, 6144')
    a('s_cmp_lt_u32 s87, %d' % KVF_SZ)
    a('s_cbranch_scc1 L_a_fb2')
    a('s_branch L_a_out')


def role_g1(a):
    XB = 32768
    ACC, WF, XF, CSA = 128, 64, 32, 8
    a('; ---- gate / up tile')
    a('L_roleG1:')
    if OPT.get('g1early'):
        prio(a, 3)
    a('s_and_b32 s4, s2, 7')
    a('s_lshr_b32 s5, s2, 3')
    a('s_and_b32 s6, s4, 3')
    a('s_mul_i32 s6, s6, 27')
    a('s_add_u32 s6, s6, s5')
    a('s_lshr_b32 s79, s6, 2')
    a('s_and_b32 s6, s6, 3')
    a('s_and_b32 s4, s4, 4')
    a('s_add_u32 s76, s4, s6')
    if OPT.get('same'):
        a('s_mov_b32 s76, 0')
        a('s_mov_b32 s79, 0')
    a('s_lshr_b32 s78, s3, 1')
    a('s_cmp_eq_u32 s78, 0')
    a('s_cselect_b32 s44, s28, s30')
    a('s_cselect_b32 s45, s29, s31')
    a('s_mov_b32 s46, %d' % (640 * 3456))
    a('s_lshl_b32 s4, s76, 8')
    a('s_lshl_b32 s5, s3, 6')
    a('s_add_u32 s77, s4, s5')
    x_voff(a, 24, 25, 's77', 2, 3)
    a('v_lshrrev_b32 v2, 3, v0')
    a('v_mul_u32_u24 v2, 3456, v2')
    a('v_bfe_u32 v3, v0, 4, 1')
    a('s_lshl_b32 s4, s78, 1')
    a('v_or_b32 v3, s4, v3')
    a('v_lshlrev_b32 v3, 1, v3')
    a('v_and_b32 v4, 7, v0')
    a('v_xor_b32 v3, v3, v4')
    a('v_lshl_add_u32 v2, v3, 4, v2')
    a('s_and_b32 s4, s3, 1')
    a('s_mul_i32 s5, s4, %d' % (32 * 3456))
    a('s_lshl_b32 s6, s79, 7')
    a('s_add_u32 s5, s5, s6')
    a('v_add_u32 v26, s5, v2')
    a('s_lshl_b32 s81, s78, 13')
    a('s_lshl_b32 s4, s4, 12')
    a('s_add_u32 s81, s81, s4')
    a('s_mul_i32 s80, s3, 12288')
    a('s_add_u32 s80, s80, %d' % XB)
    a('s_and_b32 s6, s76, 3')
    a('s_mul_i32 s6, s6, 5')
    a('s_lshr_b32 s6, s6, 1')
    a('s_mul_i32 s7, s79, 3')
    a('s_add_u32 s6, s6, s7')
    a('s_mul_i32 s7, s6, 6554')
    a('s_lshr_b32 s7, s7, 16')
    a('s_mul_i32 s7, s7, 10')
    a('s_sub_u32 s6, s6, s7')
    if not OPT.get('rot'):
        a('s_mov_b32 s6, 0')
    rot_init(a, 's88', 's6', 10, 128)
    rot_init(a, 's89', 's6', 10, 64 * 3456)
    vm = VM()

    def dmax(n):
        if n > 19:
            return []
        j, t = n >> 1, n & 1
        o = [['s_add_u32 m0, s80, %d' % ((n % 3) * 4096 + m * 1024), 's_add_u32 s4, s88, %d' % ((32 * t + 8 * m) * 1280),
              'buffer_load_dwordx4 v%d, %s, s4 offen lds' % (24 + (m & 1), X), ('x', n)] for m in range(4)]
        if t == 1:
            o[3][3:3] = rot_step('s88', 10, 128)
        return o

    def dmaw(j):
        if j > 9:
            return []
        o = [['s_add_u32 m0, s81, %d' % ((j & 1) * 16384 + n * 1024), 's_add_u32 s4, s89, %d' % (8 * n * 3456),
              'buffer_load_dwordx4 v26, %s, s4 offen lds' % W, ('w', j)] for n in range(4)]
        o[3][3:3] = rot_step('s89', 10, 64 * 3456)
        return o

    if OPT.get('ft'):
        a('s_lshr_b32 s5, s2, 3')
        a('s_lshl_b32 s6, s5, 2')
        a('s_add_u32 s6, s6, s3')
        a('s_mul_i32 s6, s6, 72')
        a('s_and_b32 s7, s2, 3')
        a('s_mul_i32 s8, s7, 2560')
        a('v_add_u32 v2, s6, v0')
        a('v_add_u32 v3, 64, v2')
        for r in (2, 3):
            a('v_cmp_le_u32 vcc, s8, v%d' % r)
            a('v_add_u32 v4, 2560, v%d' % r)
            a('v_cndmask_b32 v4, v%d, v4, vcc' % r)
            a('v_lshlrev_b32 v%d, 7, v4' % (10 + r))
        a('s_and_b32 s8, s2, 4')
        a('s_mul_i32 s8, s8, %d' % (256 * 1280))
        a('s_lshl_b32 s5, s5, 1')
        a('s_and_b32 s6, s3, 1')
        a('s_add_u32 s5, s5, s6')
        a('s_mul_i32 s5, s5, %d' % (12 * 3456))
        a('s_mul_i32 s7, s7, 27')
        a('s_lshr_b32 s7, s7, 2')
        a('s_lshl_b32 s7, s7, 7')
        a('s_add_u32 s5, s5, s7')
        a('v_lshrrev_b32 v2, 3, v0')
        a('v_mul_u32_u24 v2, 3456, v2')
        a('v_and_b32 v3, 7, v0')
        a('v_lshl_add_u32 v2, v3, 7, v2')
        emit(a, vm, ['buffer_load_dword v31, v2, %s, s5 offen' % W, 'pf'])
        emit(a, vm, ['buffer_load_dword v31, v12, %s, s8 offen' % X, 'pf'])
        a('s_add_u32 s5, s5, %d' % (8 * 3456))
        a('s_mov_b32 exec_hi, 0')
        emit(a, vm, ['buffer_load_dword v31, v2, %s, s5 offen' % W, 'pf'])
        a('s_mov_b32 exec_lo, 0xff')
        emit(a, vm, ['buffer_load_dword v31, v13, %s, s8 offen' % X, 'pf'])
        a('s_mov_b64 exec, -1')
    x_raddr(a, 20, 's80', 2, 3)
    tr_lane(a, 2, 3, 8)
    a('v_lshlrev_b32 v2, 7, v2')
    a('v_add_u32 v2, v2, v3')
    a('v_bfe_u32 v3, v0, 4, 1')
    a('v_lshl_add_u32 v2, v3, 13, v2')
    a('v_lshlrev_b32 v3, 1, v3')
    a('v_bfe_u32 v4, v0, 3, 1')
    a('v_or_b32 v3, v3, v4')
    a('v_xor_b32 v3, s3, v3')
    for c in range(4):
        a('v_xor_b32 v4, %d, v3' % c)
        a('v_lshl_add_u32 v%d, v4, 5, v2' % (16 + c))
    sel_ones(a, 4, 2, 3)
    a('v_and_b32 v27, 31, v0')
    a('v_lshlrev_b32 v27, 4, v27')
    a('s_lshl_b32 s14, s77, 4')
    a('s_add_u32 s14, s14, 0x%x' % STATS)
    if OPT.get('g1nocs'):
        for r in range(CSA, CSA + 4):
            a('v_mov_b32 v%d, 0' % r)
    wprobe_setup(a)
    if OPT.get('gate'):
        nonce_get(a, 30, False)
        a('s_lshl_b32 s6, s2, 7')
        a('s_add_u32 s98, s6, 0x%x' % GFLAG)
        poll(a, 's98', '1', optional=False, addr=1, tmp=12)
        a('s_waitcnt vmcnt(0)')
    if OPT.get('ft') == 2:
        a('s_waitcnt vmcnt(0)')
    for d in dmax(0) + dmaw(0) + dmax(1):
        emit(a, vm, d)

    def rdw(j, s, c):
        return ['ds_read_b64_tr_b16 %s, v%d offset:%d' % (vr(WF + 16 * s + 4 * c + 2 * u, 2), 16 + c, (j & 1) * 16384 + s * 2048 + u * 512) for u in range(2)]

    def rdx(n):
        return ['ds_read_b128 %s, v%d offset:%d' % (vr(XF + 16 * (n & 1) + 4 * s, 4), 20 + s, (n % 3) * 4096) for s in range(4)]

    G1P = OPT.get('g1prio', 3)
    a('s_waitcnt vmcnt(%d)' % vm.cnt(('w', 0)))
    a('s_barrier')
    stamp(a, 1)
    if G1P:
        prio(a, G1P)
    for y in rdx(0):
        a(y)
    for s in range(4):
        for c in range(4):
            for y in rdw(0, s, c):
                a(y)
    for n in range(19):
        j, t = n >> 1, n & 1
        if n == OPT.get('g1lo', 4):
            G1P = 0
            prio(a, 0)
        if n == OPT.get('g1hi', -1):
            G1P = 3
            prio(a, 3)
        xr = rdx(n + 1) if n < 19 else []
        if t == 0:
            if n < 19:
                a('s_waitcnt vmcnt(%d) lgkmcnt(12)' % vm.cnt(('x', n + 1)))
            dm = dict(zip((1, 4, 7, 10), dmax(n + 3)))
            dm.update(zip((12, 14), dmax(n + 4)[:2]))
            if n == 0:
                dm = dict(enumerate(dmaw(1) + dmax(2) + dmax(3)))
                dm.update(zip((12, 14), dmax(4)[:2]))
        else:
            if n < 19:
                cw = vm.cnt(('w', j + 1))
                if vm.has(('x', n + 1)):
                    cw = vm.cnt(('x', n + 1))
                a('s_waitcnt vmcnt(%d)' % cw)
                a('s_barrier')
            if n == 9:
                stamp(a, 2, low=G1P)
            if OPT.get('g1st') and n in (1, 3, 5, 7, 11):
                stamp(a, {1: 7, 3: 8, 5: 9, 7: 11, 11: 12}[n], low=G1P)
            dm = dict(zip((1, 3, 6, 9), dmaw(j + 2)))
            dm.update(zip((11, 14), dmax(n + 3)[2:]))
            if n == 15:
                dm[5] = [nonce_load(a, 13), 'n']
            if n == 17:
                dm[5] = ['buffer_load_dwordx4 v[28:31], v27, %s, s14 offen sc1' % WSR, 'st']
        if n == 18:
            dm[3] = ['buffer_load_dwordx4 v[24:27], v27, %s, s14 offen offset:512 sc1' % WSR, 'st']
            dm[5] = ['s_mov_b32 s98, 0x%x' % WFLAG] + poll_issue(a, 's98', '0x7ff', 12, 14) + ['p']
        if OPT.get('g1nodma'):
            dm = {}
            for tg in [('x', n + 3), ('x', n + 4), ('w', j + 2)]:
                vm.issue(tg)
        k = 0
        for s in range(4):
            for c in range(4):
                if t == 0 and k == 8:
                    a('s_waitcnt lgkmcnt(4)')
                mfma(a, ACC + 64 * t + 16 * c, WF + 16 * s + 4 * c, XF + 16 * t + 4 * s, c='0' if (j, s) == (0, 0) else None)
                if t == 0 and k == 11:
                    a('s_waitcnt lgkmcnt(0)')
                if k in dm:
                    emit(a, vm, dm[k])
                if k < 4 and xr:
                    a(xr[k])
                if t == 1 and j < 9 and not OPT.get('g1nords'):
                    for y in rdw(j + 1, s, c):
                        a(y)
                if t == 0 and c == 1 and not OPT.get('g1nocs'):
                    rowsum(a, CSA, WF + 16 * s, 4, first=(j, s) == (0, 0))
                k += 1
    prio(a, 3)
    stamp(a, 3)
    CS = 0
    a('s_lshl_b32 s4, s3, 7')
    a('s_add_u32 s4, s4, %d' % CS)
    rowsum_store(a, CSA, 's4', 2, 3)
    a('s_waitcnt vmcnt(0)')
    nonce_get(a, 13, True)
    a('s_mov_b32 s70, %d' % SPIN)
    a('L_g1_stats:')
    for i, r in enumerate((29, 31, 25, 27)):
        a('v_cmp_eq_u32 s[%d:%d], s64, v%d' % (6 + 2 * i, 7 + 2 * i, r))
    a('s_and_b64 s[6:7], s[6:7], s[8:9]')
    a('s_and_b64 s[10:11], s[10:11], s[12:13]')
    a('s_and_b64 s[6:7], s[6:7], s[10:11]')
    a('s_cmp_eq_u64 s[6:7], -1')
    a('s_cbranch_scc1 L_g1_stats_done')
    a('v_and_b32 v2, 31, v0')
    a('v_lshlrev_b32 v2, 4, v2')
    a('buffer_load_dwordx4 v[28:31], v2, %s, s14 offen sc1' % WSR)
    a('buffer_load_dwordx4 v[24:27], v2, %s, s14 offen offset:512 sc1' % WSR)
    a('s_waitcnt vmcnt(0)')
    spin_tail(a, 'L_g1_stats')
    a('v_rsq_f32 v29, v30')
    a('v_rsq_f32 v25, v26')
    a('v_lshrrev_b32 v3, 5, v0')
    a('s_lshl_b32 s5, s3, 7')
    a('v_lshl_add_u32 v3, v3, 4, s5')
    a('s_lshr_b32 s5, s77, 5')
    a('s_mul_i32 s5, s5, 108')
    a('s_lshl_b32 s6, s79, 2')
    a('s_add_u32 s5, s5, s6')
    for c in range(4):
        a('s_xor_b32 s%d, s3, %d' % (8 + c, c))
        a('s_add_u32 s%d, s%d, s5' % (8 + c, 8 + c))
        a('s_lshl_b32 s%d, s%d, 10' % (8 + c, 8 + c))
        a('s_add_u32 s%d, s%d, 0x%x' % (8 + c, 8 + c, HF))
    a('v_lshlrev_b32 v13, 4, v0')
    a('s_waitcnt lgkmcnt(0)')
    a('s_barrier')

    a_raw = a
    if OPT.get('nopk'):
        import re as _re

        class _NoPk:
            def __call__(self, text):
                m_ = _re.match(r'v_pk_(fma|mul)_f32 (.*)', text)
                if not m_:
                    return a_raw(text)
                regs = [int(x) for x in _re.findall(r'v\[(\d+):', m_.group(2))]
                for h_ in range(2):
                    a_raw('v_%s_f32 %s' % (m_.group(1), ', '.join('v%d' % (r + h_) for r in regs)))
        a = _NoPk()

    def rdcs(c, d):
        a('v_xor_b32 v2, %d, v3' % (128 * c))
        for q in range(4):
            a('ds_read_b128 %s, v2 offset:%d' % (vr(d + 4 * q, 4), CS + 32 * q))

    rdcs(0, 32)
    stamp(a, 4) if not OPT.get('st4') else None
    T = 16
    for t in range(2):
        st = (28, 24)[t]
        a('v_mul_f32 v4, 0x%x, v%d' % (f2u(C1), st + 1))
        a('v_mul_f32 v6, v%d, v%d' % (st + 1, st + 1))
        a('v_mul_f32 v6, v6, v4')
        a('v_mul_f32 v6, 0x%x, v6' % f2u(0.044715))
        a('v_mov_b32 v8, v%d' % (st + 2))
        a('v_mov_b32 v9, v%d' % (st + 2))
        a('v_mov_b32 v5, v4')
        a('v_mov_b32 v7, v6')
        a('v_mov_b32 v10, v%d' % st)
        a('v_mov_b32 v11, v%d' % st)
        for c in range(4):
            ac = ACC + 64 * t + 16 * c
            ms = [(ACC + 64 + 16 * c2, WF + 16 * c + 4 * c2, XF + 16 + 4 * c) for c2 in range(4)] if t == 0 else []

            def m():
                if ms:
                    mfma(a, *ms.pop(0))

            a('s_waitcnt lgkmcnt(0)')
            for i in range(0, 16, 2):
                a('v_pk_fma_f32 %s, %s, v[10:11], %s' % (vr(ac + i, 2), vr(32 + i, 2), vr(ac + i, 2)))
            if (t, c) != (1, 3):
                rdcs((c + 1) & 3, 32)
            for i in range(0, 8, 2):
                a('v_pk_mul_f32 %s, %s, %s' % (vr(T + i, 2), vr(ac + i, 2), vr(ac + i, 2)))
            for i in range(0, 8, 2):
                a('v_pk_fma_f32 %s, %s, v[6:7], v[4:5]' % (vr(T + i, 2), vr(T + i, 2)))
            for i in range(0, 8, 2):
                a('v_pk_mul_f32 %s, %s, %s' % (vr(T + i, 2), vr(T + i, 2), vr(ac + i, 2)))
            for i in range(0, 8, 2):
                a('v_pk_mul_f32 %s, %s, %s' % (vr(ac + i, 2), vr(ac + i, 2), vr(ac + 8 + i, 2)))
            for i in range(8):
                if i in (0, 3):
                    m()
                a('v_exp_f32 v%d, v%d' % (T + i, T + i))
            for i in range(8):
                if i in (0, 4):
                    m()
                a('v_fma_f32 v%d, v%d, v8, v8' % (T + i, T + i))
                if i:
                    a('v_rcp_f32 v%d, v%d' % (T + i - 1, T + i - 1))
            a('v_rcp_f32 v%d, v%d' % (T + 7, T + 7))
            for i in range(0, 8, 2):
                a('v_pk_mul_f32 %s, %s, %s' % (vr(ac + i, 2), vr(ac + i, 2), vr(T + i, 2)))
            for i in range(4):
                a('v_cvt_pk_bf16_f32 v%d, v%d, v%d' % (ac + 8 + i, ac + 2 * i, ac + 2 * i + 1))
            a('buffer_store_dwordx4 %s, v13, %s, s%d offen sc1' % (vr(ac + 8, 4), WSR, 8 + c))
            if t == 0:
                a('s_add_u32 s%d, s%d, %d' % (8 + c, 8 + c, 108 * 1024))
    a = a_raw
    stamp(a, 5)
    a('s_lshl_b32 s4, s76, 2')
    a('s_add_u32 s4, s4, s3')
    a('s_lshl_b32 s4, s4, 12')
    a('s_lshl_b32 s5, s79, 7')
    a('s_add_u32 s4, s4, s5')
    a('s_add_u32 s15, s4, 0x%x' % HFLAG)


def role_g2(a):
    ACC, WP = 176, 48
    RG = [96 + 20 * d for d in range(4)]
    OB = [96 + 8 * d for d in range(10)]
    D = 4
    LA = OPT.get('la', 3)
    G2P = OPT.get('g2prio', 0)
    a('; ---- down projection + output projection + residual')
    a('L_roleG2:')
    stamp(a, 6)
    if OPT.get('noG2'):
        a('s_branch L_fin')
    a('s_and_b32 s4, s2, 7')
    a('s_lshr_b32 s5, s2, 3')
    a('s_and_b32 s78, s5, 1')
    a('s_bfe_u32 s79, s5, 0x20001')
    a('s_lshr_b32 s5, s5, 3')
    a('s_lshl_b32 s4, s4, 2')
    a('s_add_u32 s76, s4, s5')
    a('s_mul_i32 s12, s3, 27')
    a('s_lshr_b32 s13, s12, 2')
    a('v_lshlrev_b32 v27, 4, v0')
    a('v_lshlrev_b32 v47, 7, v0')
    a('v_cmp_eq_u32 vcc, s64, v12')
    a('s_and_b64 s[68:69], vcc, s[66:67]')
    a('s_cmp_eq_u64 s[68:69], s[66:67]')
    a('s_cbranch_scc1 L_g2_wok')
    poll(a, 's98', '0x7ff', addr=14, tmp=12)
    a('s_waitcnt vmcnt(0)')
    a('L_g2_wok:')
    a('s_mul_i32 s77, s79, 5')
    a('s_lshl_b32 s4, s78, 1')
    a('s_add_u32 s77, s77, s4')
    a('s_add_u32 s6, s77, s78')
    a('s_add_u32 s7, s6, 1')
    a('s_xor_b32 s8, s78, 1')
    a('s_lshl_b32 s8, s8, 1')
    a('s_add_u32 s8, s8, s77')
    a('s_lshl_b32 s5, s76, 1')
    a('s_add_u32 s84, s5, s78')
    a('s_xor_b32 s85, s84, 1')
    a('s_and_b32 s4, s76, 3')
    a('s_mul_i32 s4, s4, %d' % OPT.get('rot2', 7))
    KS = 1024 if OPT.get('ctm', 1) else 20480
    CS_ = 148 * 1024 if OPT.get('ctm', 1) else 1024
    rot_init(a, 's86', 's4', 27, KS)
    rot_init(a, 's87', 's4', 27, 1024)
    a('s_bfe_u32 s4, s2, 0x30003')
    a('s_mul_i32 s4, s4, %d' % OPT.get('rot3', 0))
    a('s_lshr_b32 s4, s4, 2')
    rot_init(a, 's71', 's4', 10, KS)
    rot_init(a, 's65', 's4', 10, 1024)
    a('s_mul_i32 s4, s12, %d' % KS)
    a('s_add_u32 s4, s4, 0x%x' % WT)
    a('s_mul_i32 s5, s3, %d' % (10 * KS))
    a('s_add_u32 s5, s5, 0x%x' % (WT + 108 * KS))
    for c in range(3):
        a('s_mul_i32 s9, s%d, %d' % (6 + c, CS_))
        a('s_add_u32 s%d, s9, s4' % (80 + c))
        a('s_add_u32 s%d, s9, s5' % (9 + c if c else 83))
    prio(a, G2P)
    vm = VM()

    def ldw(i):
        o = [['s_add_u32 s4, s%d, s86' % (80 + c), 'buffer_load_dwordx4 %s, v27, %s, s4 offen sc1' % (vr(RG[i % D] + 4 * c, 4), WSR), ('w', i)] for c in range(3)]
        o[2][2:2] = rot_step('s86', 27, KS)
        return o

    def ldh(i):
        o = [['s_add_u32 s4, s%d, s87' % (94 + k), 'buffer_load_dwordx4 %s, v27, %s, s4 offen sc1' % (vr(RG[i % D] + 12 + 4 * k, 4), WSR), ('a', i)] for k in range(2)]
        o[1][2:2] = rot_step('s87', 27, 1024)
        return o

    def ldo(n):
        i, c = divmod(n, 3)
        sb = (83, 10, 11)[c]
        st = rot_step('s71', 10, KS) if c == 2 else []
        if i < 4:
            return ['s_add_u32 s4, s%d, s71' % sb, 'buffer_load_dwordx4 %s, v27, %s, s4 offen sc1' % (vr(WP + 12 * i + 4 * c, 4), WSR)] + st + ['wo']
        return ['s_add_u32 m0, s93, %d' % ((n - 12) * 1024), 's_add_u32 s4, s%d, s71' % sb,
                'buffer_load_dwordx4 v27, %s, s4 offen sc1 lds' % WSR] + st + ['wo']

    for i in range(LA):
        for d in ldw(i):
            emit(a, vm, d)
    prio(a, 3)
    tiles = ((84, 6), (84, 7), (84, 8), (85, 6), (85, 7))
    for k, (T, c) in enumerate(tiles):
        a('s_mul_i32 s%d, s%d, %d' % (88 + k, T, 32 * 1280))
        a('s_lshl_b32 s4, s%d, 6' % c)
        a('s_add_u32 s%d, s%d, s4' % (88 + k, 88 + k))
    a('s_mul_i32 s93, s3, 20480')
    a('v_lshrrev_b32 v2, 3, v0')
    a('s_lshl_b32 s4, s3, 3')
    a('v_add_u32 v2, s4, v2')
    a('v_and_b32 v3, 7, v0')
    a('v_mul_u32_u24 v28, 1280, v2')
    a('v_lshl_add_u32 v28, v3, 3, v28')
    a('v_xor_b32 v3, v3, v2')
    a('v_and_b32 v3, 7, v3')
    a('v_lshlrev_b32 v29, 7, v2')
    a('v_lshl_add_u32 v29, v3, 4, v29')
    a('v_add_u32 v44, 61440, v29')
    a('v_add_u32 v16, s93, v27')
    a('v_and_b32 v2, 31, v0')
    a('v_lshrrev_b32 v3, 5, v0')
    a('v_xor_b32 v3, v3, v0')
    a('v_and_b32 v3, 7, v3')
    a('v_lshlrev_b32 v2, 7, v2')
    a('v_add_u32 v2, s93, v2')
    for q in range(4):
        a('v_xor_b32 v4, %d, v3' % (2 * q))
        a('v_lshl_add_u32 v%d, v4, 4, v2' % (40 + q))
    a('s_bfe_u32 s4, s2, 0x30003')
    a('s_mul_i32 s4, s4, 54')
    a('v_add_u32 v2, s4, v0')
    a('v_lshlrev_b32 v45, 7, v2')
    a('v_add_u32 v3, %d, v45' % (108 * 1024 - 216 * 128))
    a('v_cmp_lt_u32 vcc, 215, v2')
    a('s_mul_i32 s14, s76, %d' % (216 * 1024))
    a('s_lshl_b32 s4, s12, 10')
    a('v_cndmask_b32 v45, v45, v3, vcc')
    a('v_mov_b32 v46, s64')
    prio(a, G2P)
    a('s_add_u32 s14, s14, s4')
    a('s_add_u32 s14, s14, 0x%x' % HF)
    for k, T in enumerate((84, 85)):
        a('s_mul_i32 s%d, s%d, %d' % (94 + k, T, 108 * 1024))
        a('s_add_u32 s%d, s%d, s4' % (94 + k, 94 + k))
        a('s_add_u32 s%d, s%d, 0x%x' % (94 + k, 94 + k, HF))
        a('s_mul_i32 s%d, s%d, 40960' % (96 + k, T))
        a('s_mul_i32 s5, s3, 10240')
        a('s_add_u32 s%d, s%d, s5' % (96 + k, 96 + k))
        a('s_add_u32 s%d, s%d, 0x%x' % (96 + k, 96 + k, OF))
    for k in range(5):
        a('buffer_load_dwordx2 %s, v28, %s, s%d offen' % (vr(30 + 2 * k, 2), X, 88 + k))
    a('s_waitcnt vmcnt(%d)' % (3 * LA + 5))
    a('s_mov_b64 exec, 1')
    a('buffer_store_dword v46, off, %s, s15 sc1' % WSR)
    a('s_mov_b64 exec, -1')
    a('s_barrier')
    no = 0
    for n_ in range(OPT.get('wopre', 0)):
        for y in ldo(n_)[:-1]:
            a(y)
        no += 1
    a('s_lshl_b32 s4, s76, 12')
    a('s_lshl_b32 s5, s13, 7')
    a('s_add_u32 s4, s4, s5')
    a('s_add_u32 s98, s4, 0x%x' % HFLAG)
    a('s_mul_i32 s5, s3, 3')
    a('s_and_b32 s5, s5, 2')
    a('s_lshl_b32 s5, s5, 6')
    a('s_or_b32 s7, s5, 0x7f')
    stamp(a, 7, low=G2P)
    poll(a, 's98', 's7', low=G2P, addr=47, tmp=12)
    vm.q = []
    stamp(a, 4, low=G2P) if OPT.get('st4') else None
    if OPT.get('g2same'):
        for r in (80, 81, 82):
            a('s_mov_b32 s%d, 0x%x' % (r, WT))
        for r in (94, 95):
            a('s_mov_b32 s%d, 0x%x' % (r, HF))
    for d in ldh(0):
        emit(a, vm, d)
    if OPT.get('htouch'):
        a('s_mov_b32 exec_hi, 0x3fffff')
        emit(a, vm, ['buffer_load_dword v26, v45, %s, s14 offen sc1' % WSR, 'pf'])
        a('s_mov_b32 exec_hi, -1')
    for i in range(1, LA):
        for d in ldh(i):
            emit(a, vm, d)
    order = ((0, 0), (1, 0), (0, 1), (1, 1), (0, 2))
    assert LA == 3

    def oreg(i, k):
        n = 2 * i + k
        return RG[(3 + n // 5) % D] + 4 * (n % 5)

    def ldo2(n):
        i, k = divmod(n, 2)
        return ['s_add_u32 s4, s%d, %d' % (96 + k, (i >> 2) * 4096),
                'buffer_load_dwordx4 %s, v27, %s, s4 offen offset:%d sc1' % (vr(oreg(i, k), 4), WSR, (i & 3) * 1024), ('o', i)]

    def step(i, pend):
        if vm.has(('a', i)):
            a('s_waitcnt vmcnt(%d)' % vm.cnt(('a', i)))
        for k, (T, c) in enumerate(order):
            kk = c if T == 0 else 3 + c
            mfma(a, ACC + 16 * kk, RG[i % D] + 4 * c, RG[i % D] + 12 + 4 * T, c='0' if i == 0 else None)
            if pend:
                emit(a, vm, pend.pop(0))
        for d in pend:
            emit(a, vm, d)

    PR = OPT.get('oprobe', 22)
    for i in range(24):
        pend = ldw(i + LA) + ldh(i + LA)
        if OPT.get('g2now'):
            pend = pend[3:]
        while len(pend) < (7 if i < 8 else 6) and no < 30:
            pend.append(ldo(no))
            no += 1
        step(i, pend)
        if i == PR:
            a('s_lshl_b32 s4, s76, 12')
            a('s_lshl_b32 s5, s3, 10')
            a('s_add_u32 s4, s4, s5')
            a('s_add_u32 s98, s4, 0x%x' % OFLAG)
            emit(a, vm, poll_issue(a, 's98', '0xff', 12, 47) + ['p'])
    assert no == 30
    stamp(a, 10, low=G2P)
    a('s_waitcnt vmcnt(%d)' % vm.cnt('p'))
    prio(a, 3)
    a('v_cmp_eq_u32 vcc, s64, v12')
    a('s_and_b64 s[68:69], vcc, s[66:67]')
    a('s_cmp_eq_u64 s[68:69], s[66:67]')
    a('s_cbranch_scc0 L_g2_late')
    q0 = list(vm.q)
    for i in range(24, 27):
        step(i, [ldo2(n) for n in range(5 * (i - 24), 5 * (i - 24) + 5)])
    for n in range(15, 20):
        emit(a, vm, ldo2(n))
    a('L_g3:')
    stamp(a, 11)
    NM = OPT.get('nm', 8)
    for i in range(NM):
        w_ = vm.cnt(('o', i))
        if i < 4:
            a('s_waitcnt vmcnt(%d)' % w_)
        else:
            a('s_waitcnt vmcnt(%d) lgkmcnt(%d)' % (w_, 3 * (min(9, i + 3) - i)))
        b = WP + 12 * (i & 3)
        for k, (T, c) in enumerate(order):
            kk = c if T == 0 else 3 + c
            mfma(a, ACC + 16 * kk, b + 4 * c, oreg(i, T))
        if i + 4 < 10:
            for c in range(3):
                a('ds_read_b128 %s, v16 offset:%d' % (vr(b + 4 * c, 4), (3 * i + c) * 1024))
    a('s_waitcnt vmcnt(0) lgkmcnt(0)')
    wr = []
    for T, c in order:
        kk = c if T == 0 else 3 + c
        for i in range(NM, 10):
            mfma(a, ACC + 16 * kk, WP + 12 * (i & 3) + 4 * c, oreg(i, T))
            for _ in range(2):
                if len(wr) > 4 + (0 if i > NM else 4):
                    a(wr.pop(0))
        wr += ['ds_write_b128 v%d, %s offset:%d' % (40 + q, vr(ACC + 16 * kk + 4 * q, 4), kk * 4096) for q in range(4)]
    for y in wr:
        a(y)

    def late():
        a('L_g2_late:')
        prio(a, G2P)
        vm.q = list(q0)
        for i in range(24, 27):
            step(i, [poll_issue(a, 's98', '0xff', 12, 47) + ['p']] if i == 26 else [])
        if OPT.get('noA'):
            a('s_waitcnt vmcnt(0)')
        else:
            poll(a, 's98', '0xff', low=3, addr=47, tmp=12, issued=True)
        for n in range(20):
            emit(a, vm, ldo2(n))
        stamp(a, 12)
        a('s_branch L_g3')

    stamp(a, 9)
    a('s_waitcnt lgkmcnt(0)')
    a('s_barrier')
    stamp(a, 8)
    for k in range(5):
        for w in range(4):
            if w < 3:
                a('ds_read_b128 %s, v29 offset:%d' % (vr(64 + 16 * k + 4 * w, 4), w * 20480 + k * 4096))
            else:
                a('ds_read_b128 %s, v44 offset:%d' % (vr(64 + 16 * k + 4 * w, 4), k * 4096))
    a('s_mov_b32 s4, 0xffff0000')
    for k in range(5):
        b = 64 + 16 * k
        a('v_lshlrev_b32 v48, 16, v%d' % (30 + 2 * k))
        a('v_and_b32 v49, s4, v%d' % (30 + 2 * k))
        a('v_lshlrev_b32 v50, 16, v%d' % (31 + 2 * k))
        a('v_and_b32 v51, s4, v%d' % (31 + 2 * k))
        a('s_waitcnt lgkmcnt(%d)' % min(15, 4 * (4 - k)))
        for h in range(2):
            a('v_pk_add_f32 %s, %s, %s' % (vr(b + 2 * h, 2), vr(b + 2 * h, 2), vr(b + 4 + 2 * h, 2)))
            a('v_pk_add_f32 %s, %s, %s' % (vr(b + 8 + 2 * h, 2), vr(b + 8 + 2 * h, 2), vr(b + 12 + 2 * h, 2)))
        for h in range(2):
            a('v_pk_add_f32 %s, %s, %s' % (vr(b + 2 * h, 2), vr(b + 2 * h, 2), vr(48 + 2 * h, 2)))
        for h in range(2):
            a('v_pk_add_f32 %s, %s, %s' % (vr(b + 2 * h, 2), vr(b + 2 * h, 2), vr(b + 8 + 2 * h, 2)))
        a('v_cvt_pk_bf16_f32 v%d, v%d, v%d' % (b + 4, b, b + 1))
        a('v_cvt_pk_bf16_f32 v%d, v%d, v%d' % (b + 5, b + 2, b + 3))
        a('buffer_store_dwordx2 %s, v28, %s, s%d offen' % (vr(b + 4, 2), OUT, 88 + k))
    a('s_branch L_fin')
    late()
    if OPT.get('noA') or OPT.get('noG1'):
        a('L_idle:')
        for i in range(8):
            a('s_sleep 127')
    a('L_fin:')
    stamp_flush(a)
    a('L_end:')
    a('s_endpgm')


DOC = '''; ---------------------------------------------------------------------------------------------------------------
;                   fragments; then every one an output tile: H Wd + O Wo + x, K split over the four waves.
; Softmax shift: row max over the first 64 keys + 96 (exact three-term bf16 split in spare k slots).  After the loop
; ---------------------------------------------------------------------------------------------------------------
'''
HEAD = open('cdna_kernels/%s.s.ref' % NAME).read().split('; Override launch')[0]


def build(verbose=False):
    uid[0] = 0
    a = Asm()
    prologue(a)
    role_kv(a)
    role_a(a)
    role_g1(a)
    role_g2(a)
    n = a.fix(verbose)
    s = HEAD
    s += '; @launch grid=(512,1,1) block=(256,1,1) lds=%d\n' % LDS
    s += DOC
    s += '.amdgcn_target "amdgcn-amd-amdhsa--gfx950"\n.text\n.globl %s_kernel\n.p2align 8\n.type %s_kernel,@function\n%s_kernel:\n' % (NAME, NAME, NAME)
    s += a.text()
    s += 'L_code_end:\n.set CODE_BYTES, L_code_end - %s_kernel - 256\n' % NAME
    s += '''.section .rodata,"a"
.p2align 6
.amdhsa_kernel %s_kernel
  .amdhsa_next_free_vgpr 256
  .amdhsa_next_free_sgpr 102
  .amdhsa_accum_offset 256
  .amdhsa_group_segment_fixed_size 0
  .amdhsa_kernarg_size 96
  .amdhsa_user_sgpr_count 2
  .amdhsa_user_sgpr_kernarg_segment_ptr 1
  .amdhsa_system_sgpr_workgroup_id_x 1
.end_amdhsa_kernel
''' % NAME
    return s, n


if __name__ == '__main__':
    STAMPS[0] = '-s' in sys.argv
    for x in sys.argv[1:]:
        if '=' in x:
            k, v = x.split('=')
            OPT[k] = int(v) if v.lstrip('-').isdigit() else v
    s, n = build(verbose='-v' in sys.argv)
    out = 'cdna_kernels/%s.s' % NAME if 'out' not in OPT else 'gen/%s.s' % OPT['out']
    open(out, 'w').write(s)
    print('nops inserted:', n, 'lines:', s.count('\n'))
```
